```python
import torch

def _softmax(x, axis=-1):
    return torch.softmax(x, dim=axis)
def _gelu(x):
    return torch.nn.functional.gelu(x, approximate="tanh")
def _silu(x):
    return torch.nn.functional.silu(x)
def _sigmoid(x):
    return torch.sigmoid(x)
def _layernorm(x, axis=-1, eps=1e-5):
    m = x.mean(dim=axis, keepdim=True)
    v = x.var(dim=axis, keepdim=True, unbiased=False)
    return (x - m) / torch.sqrt(v + eps)
def _scatter_add(tgt, idx, src, axis=0):
    return tgt.clone().index_add_(axis, idx, src)
def _segment_sum(src, seg, n):
    out = torch.zeros((n,) + src.shape[1:], dtype=src.dtype)
    return out.index_add_(0, seg, src)
def _pad(x, pw):
    flat = tuple(v for pair in reversed(pw) for v in pair)
    return torch.nn.functional.pad(x, flat)

kernel_name = 'interleave_layers__ssm_conv_s4d__mixer_channel_mlp__prompt'

def setup_inputs():

    _w = (lambda a: (lambda t: t.to(torch.bfloat16) if t.is_floating_point() else t)(torch.as_tensor(a)))
    def _A_setup():
        Bsz, L, D, N = 1, 2048, 512, 128
        return {
            "u": _w((lambda *s: torch.randn(*s, dtype=torch.bfloat16) * 0.05)(Bsz, L, D)),
            "log_A_real": _w((lambda *s: torch.randn(*s, dtype=torch.bfloat16) * 3.2)(D, N) * 0.5),
            "A_imag": _w((lambda *s: torch.randn(*s, dtype=torch.bfloat16) * 0.05)(D, N) * 3.14),
            "C_real": _w((lambda *s: torch.randn(*s, dtype=torch.bfloat16) * 0.05)(D, N) / N ** 0.5),
            "C_imag": _w((lambda *s: torch.randn(*s, dtype=torch.bfloat16) * 0.05)(D, N) / N ** 0.5),
            "log_dt": _w((lambda *s: torch.randn(*s, dtype=torch.bfloat16) * 0.05)(D) * 0.5 - 4.0),
            "D_skip": _w((lambda *s: torch.randn(*s, dtype=torch.bfloat16) * 0.05)(D)),
        }
    _A_in = _A_setup()

    def _B_setup():
        B, S, D, F = 1, 2048, 512, 1792
        return {
            "x": _w((lambda *s: torch.randn(*s, dtype=torch.bfloat16) * 0.05)(B, S, D)),
            "w1": _w((lambda *s: torch.randn(*s, dtype=torch.bfloat16) * 1.6)(D, F) * (D ** -0.5)),
            "b1": _w((lambda *s: torch.randn(*s, dtype=torch.bfloat16) * 0.4)(F)),
            "w2": _w((lambda *s: torch.randn(*s, dtype=torch.bfloat16) * 0.1)(F, D) * (F ** -0.5)),
            "b2": _w((lambda *s: torch.randn(*s, dtype=torch.bfloat16) * 0.1)(D)),
        }
    _B_in = _B_setup()

    return {
        "A_u": _A_in["u"],
        "A_log_A_real": _A_in["log_A_real"],
        "A_A_imag": _A_in["A_imag"],
        "A_C_real": _A_in["C_real"],
        "A_C_imag": _A_in["C_imag"],
        "A_log_dt": _A_in["log_dt"],
        "A_D_skip": _A_in["D_skip"],
        "B_x": _B_in["x"],
        "B_w1": _B_in["w1"],
        "B_b1": _B_in["b1"],
        "B_w2": _B_in["w2"],
        "B_b2": _B_in["b2"],
    }

def reference(A_u, A_log_A_real, A_A_imag, A_C_real, A_C_imag, A_log_dt, A_D_skip, B_x, B_w1, B_b1, B_w2, B_b2):
    def _A_ref(u, log_A_real, A_imag, C_real, C_imag, log_dt, D_skip):
        L = u.shape[1]
        dt = torch.exp(log_dt)
        A = -torch.exp(log_A_real) + 1j * A_imag
        C = (C_real + 1j * C_imag) * dt[:, None]
        pos = (lambda x, dt: x.to(dt))(torch.arange(L), log_dt.dtype)
        P = torch.exp((A * dt[:, None])[:, :, None] * pos[None, None, :])
        K = 2.0 * torch.einsum("dn,dnl->dl", C, P).real
        L2 = 2 * L
        u_t = (lambda x, *d: x.permute(*d))(u, 0, 2, 1)
        Kf = (lambda x, *a, **k: torch.fft.rfft(x.float(), *a, **k))(K, L2)
        Uf = (lambda x, *a, **k: torch.fft.rfft(x.float(), *a, **k))(u_t, L2)
        y = (lambda x, *a, **k: torch.fft.irfft(x, *a, **k).to(torch.bfloat16))(Uf * Kf[None, :, :], L2)[:, :, :L]
        y = (lambda x, *d: x.permute(*d))(y, 0, 2, 1)
        return y + u * D_skip[None, None, :]

    def _B_ref(x, w1, b1, w2, b2):
        y = _layernorm(x, axis=-1)
        h = _gelu(torch.einsum("bsd,df->bsf", y, w1) + b1)
        return torch.einsum("bsf,fd->bsd", h, w2) + b2

    x = A_u
    x = x + _A_ref(_layernorm(x, axis=-1), A_log_A_real, A_A_imag, A_C_real, A_C_imag, A_log_dt, A_D_skip)
    x = x + _B_ref(_layernorm(x, axis=-1), B_w1, B_b1, B_w2, B_b2)
    x = x + _A_ref(_layernorm(x, axis=-1), A_log_A_real, A_A_imag, A_C_real, A_C_imag, A_log_dt, A_D_skip)
    x = x + _B_ref(_layernorm(x, axis=-1), B_w1, B_b1, B_w2, B_b2)
    return x
```

```python
import struct

L_, D_, F_ = 2048, 512, 1792

X0T = 0x0000000
X1T = 0x0200000
X2T = 0x0400000
X3T = 0x0600000
HF1 = 0x0800000
HF2 = 0x1000000
W1F = 0x1800000
W2F = 0x1A00000
KBUF = 0x1C00000
KSTRIDE = 4352
STATS0 = 0x2000000
STATS2 = 0x2010000
STAMPS = 0x4000000
WS_BYTES = 0x10000000

KA_U, KA_LOGA, KA_AIM, KA_CR, KA_CI, KA_LOGDT, KA_DSKIP, KA_BX, KA_W1, KA_B1, KA_W2, KA_B2, KA_OUT, KA_DBG, KA_WS = [8 * i for i in range(15)]


def f32bits(x):
    return struct.unpack("<I", struct.pack("<f", x))[0]


def fhex(x):
    return "0x%08x" % f32bits(x)


class Asm:
    def __init__(self):
        self.lines = []

    def __call__(self, s):
        for ln in s.strip("\n").split("\n"):
            ln = ln.strip()
            if not ln:
                continue
            if ln.endswith(":"):
                self.lines.append(ln)
            else:
                self.lines.append("    " + ln)

    def text(self):
        return "\n".join(self.lines) + "\n"

    def head(self, name):
        self.lines.append(f".globl {name}")
        self.lines.append(".p2align 8")
        self.lines.append(f".type {name},@function")
        self.lines.append(f"{name}:")

    def srd(self, d, base, nbytes):
        self(f"""
        s_mov_b32 s{d}, s{base}
        s_mov_b32 s{d+1}, s{base+1}
        s_mov_b32 s{d+2}, {nbytes:#x}
        s_mov_b32 s{d+3}, 0x00020000
        """)


def kd(name, vgpr, sgpr=96, accum=None):
    if accum is None:
        accum = (vgpr + 3) // 4 * 4
    return f""".p2align 6
.amdhsa_kernel {name}
  .amdhsa_next_free_vgpr {vgpr}
  .amdhsa_next_free_sgpr {sgpr}
  .amdhsa_accum_offset {accum}
  .amdhsa_group_segment_fixed_size 0
  .amdhsa_kernarg_size 120
  .amdhsa_user_sgpr_count 2
  .amdhsa_user_sgpr_kernarg_segment_ptr 1
  .amdhsa_system_sgpr_workgroup_id_x 1
.end_amdhsa_kernel
"""


def vr(a, n=1):
    return f"v{a}" if n == 1 else f"v[{a}:{a+n-1}]"


def ar(a, n=1):
    return f"a{a}" if n == 1 else f"a[{a}:{a+n-1}]"


def stamp_start(a, sreg=90):
    a(f"s_memrealtime s[{sreg}:{sreg+1}]")


def stamp_end(a, idx, ws_srd, sreg=90, vtmp=0, tid_saved=None):
    t = vtmp
    a(f"""
    s_waitcnt vmcnt(0) lgkmcnt(0)
    s_memrealtime s[{sreg+2}:{sreg+3}]
    s_waitcnt lgkmcnt(0)
    s_mov_b64 exec, -1
    v_lshrrev_b32 v{t+2}, 6, v{tid_saved}
    v_and_b32 v{t+2}, 3, v{t+2}
    v_lshlrev_b32 v{t+2}, 4, v{t+2}
    v_and_b32 v{t+3}, 63, v{tid_saved}
    v_mov_b32 v{t}, s{sreg}
    v_mov_b32 v{t+1}, s{sreg+2}
    s_lshl_b32 s{sreg+4}, s2, 6
    s_add_u32 s{sreg+4}, s{sreg+4}, {STAMPS + idx * 0x10000:#x}
    v_cmp_eq_u32 vcc, 0, v{t+3}
    s_and_saveexec_b64 s[{sreg-2}:{sreg-1}], vcc
    buffer_store_dwordx2 v[{t}:{t+1}], v{t+2}, s[{ws_srd}:{ws_srd+3}], s{sreg+4} offen
    """)
```

```python
from common import *

CS = 4416
KC = 0
UB = 8 * CS
US = 4864
UPAD = 576
XB = UB + 2 * US
RB = XB + 8192
CONV_LDS = RB + 16384


def gen_conv(a, stamps=False, idx=(1, 4)):
    for li, (name, xin, st, xout) in enumerate([("conv1_kernel", X0T, STATS0, X1T), ("conv2_kernel", X2T, STATS2, X3T)]):
        a.head(name)
        if stamps:
            stamp_start(a)
            a(f"s_mov_b32 s87, {STAMPS + idx[li] * 0x10000:#x}")
        a(f"""
        s_mov_b32 s32, {xin:#x}
        s_mov_b32 s33, {st:#x}
        s_mov_b32 s34, {xout:#x}
        s_branch Lconv_body
        """)
    a(".p2align 8")
    a("Lconv_body:")
    a(f"""
    s_cmp_ge_u32 s2, 256
    s_cbranch_scc1 Lconv_end
    s_load_dwordx2 s[4:5], s[0:1], {KA_WS}
    s_load_dwordx2 s[6:7], s[0:1], {KA_DSKIP}
    v_mov_b32 v255, v0
    v_and_b32 v1, 63, v0            ; lane
    v_lshrrev_b32 v2, 6, v0         ; wave
    v_lshlrev_b32 v3, 4, v0         ; t*16
    v_readfirstlane_b32 s3, v2
    v_lshlrev_b32 v4, 6, v0         ; t*64
    s_lshl_b32 s12, s2, 13          ; cp*2*4096
    s_add_u32 s13, s12, s32
    s_add_u32 s14, s13, 4096
    s_lshl_b32 s15, s2, 2
    s_waitcnt lgkmcnt(0)
    s_load_dword s16, s[6:7], s15
    """)
    a.srd(8, 4, WS_BYTES)
    a(f"""
    buffer_load_dwordx4 v[16:19], v4, s[8:11], s33 offen
    buffer_load_dwordx4 v[20:23], v4, s[8:11], s33 offen offset:16
    buffer_load_dwordx4 v[24:27], v4, s[8:11], s33 offen offset:32
    buffer_load_dwordx4 v[28:31], v4, s[8:11], s33 offen offset:48
    buffer_load_dwordx4 v[8:11], v3, s[8:11], s13 offen
    buffer_load_dwordx4 v[12:15], v3, s[8:11], s14 offen
    """)
    a(f"""
    s_lshr_b32 s17, s3, 1
    s_and_b32 s18, s3, 1            ; hw
    s_lshl_b32 s19, s2, 1
    s_add_u32 s19, s19, s17
    s_mul_i32 s20, s19, {KSTRIDE}
    s_add_u32 s20, s20, {KBUF + 16}
    s_lshl_b32 s21, s18, 2
    s_sub_u32 s20, s20, s21
    s_mul_i32 s22, s3, {2*CS}
    v_lshlrev_b32 v5, 4, v1         ; lane*16
    """)
    for c in range(2):
        if c == 1:
            a(f"""
            s_sub_u32 s20, s20, 2
            s_add_u32 s22, s22, {CS}
            """)
        a(f"""
        s_mov_b32 m0, s22
        s_nop 0
        buffer_load_dwordx4 v5, s[8:11], s20 offen lds
        buffer_load_dwordx4 v5, s[8:11], s20 offen offset:1024 lds
        buffer_load_dwordx4 v5, s[8:11], s20 offen offset:2048 lds
        buffer_load_dwordx4 v5, s[8:11], s20 offen offset:3072 lds
        s_add_u32 s23, s22, 4096
        s_add_u32 s24, s20, 4096
        s_mov_b32 m0, s23
        s_mov_b64 exec, 0x3ff
        buffer_load_dwordx4 v5, s[8:11], s24 offen lds
        s_mov_b64 exec, -1
        """)
    a(f"""
    v_mov_b32 v32, 0
    v_mov_b32 v33, 0
    v_mov_b32 v34, 0
    v_mov_b32 v35, 0
    v_cmp_gt_u32 vcc, 36, v0
    s_and_saveexec_b64 s[26:27], vcc
    ds_write_b128 v3, v[32:35] offset:{UB}
    ds_write_b128 v3, v[32:35] offset:{UB+US}
    v_cmp_gt_u32 vcc, 2, v0
    s_and_b64 exec, exec, vcc
    ds_write_b128 v3, v[32:35] offset:{UB+UPAD+4096}
    ds_write_b128 v3, v[32:35] offset:{UB+US+UPAD+4096}
    s_mov_b64 exec, -1
    """)
    a(f"""
    v_and_b32 v36, 15, v1
    v_lshrrev_b32 v37, 4, v1
    s_mul_i32 s25, s17, {US}
    s_add_u32 s25, s25, {UB + 64}
    s_lshl_b32 s26, s18, 6
    s_sub_u32 s25, s25, s26
    v_lshlrev_b32 v38, 5, v36
    v_lshl_add_u32 v38, v37, 4, v38
    v_add_u32 v38, s25, v38
    v_and_b32 v40, 3, v36
    v_lshrrev_b32 v41, 2, v36
    v_mul_u32_u24 v39, {CS}, v40
    v_lshl_add_u32 v39, v37, 4, v39
    v_lshlrev_b32 v41, 3, v41
    v_sub_u32 v39, v39, v41
    s_mul_i32 s25, s17, {4*CS}
    s_add_u32 s25, s25, 96
    s_sub_u32 s25, s25, s26
    v_add_u32 v39, s25, v39
    v_lshlrev_b32 v42, 5, v36
    v_lshl_add_u32 v42, v37, 3, v42
    """)
    a(f"""
    s_mov_b32 s28, {fhex(1.0/512)}
    s_mov_b32 s29, {fhex(1e-5)}
    s_waitcnt vmcnt(12)
    """)
    for p in range(4):
        s1a, s2a, s1b, s2b = 16 + 4 * p, 17 + 4 * p, 18 + 4 * p, 19 + 4 * p
        ma, mb = 44 + 2 * p, 45 + 2 * p
        ra, rb = 52 + 2 * p, 53 + 2 * p
        a(f"""
        v_mul_f32 v{s1a}, s28, v{s1a}
        v_mul_f32 v{s1b}, s28, v{s1b}
        v_mul_f32 v{s2a}, s28, v{s2a}
        v_mul_f32 v{s2b}, s28, v{s2b}
        v_fma_f32 v{s2a}, -v{s1a}, v{s1a}, v{s2a}
        v_fma_f32 v{s2b}, -v{s1b}, v{s1b}, v{s2b}
        v_cvt_pk_bf16_f32 v60, v{s1a}, v{s1b}
        v_max_f32 v{s2a}, 0, v{s2a}
        v_max_f32 v{s2b}, 0, v{s2b}
        v_lshlrev_b32 v{ma}, 16, v60
        v_and_b32 v{mb}, 0xffff0000, v60
        v_cvt_pk_bf16_f32 v61, v{s2a}, v{s2b}
        v_lshlrev_b32 v62, 16, v61
        v_and_b32 v63, 0xffff0000, v61
        v_add_f32 v62, s29, v62
        v_add_f32 v63, s29, v63
        v_cvt_pk_bf16_f32 v61, v62, v63
        v_lshlrev_b32 v62, 16, v61
        v_and_b32 v63, 0xffff0000, v61
        v_sqrt_f32 v62, v62
        v_sqrt_f32 v63, v63
        s_nop 0
        v_cvt_pk_bf16_f32 v61, v62, v63
        v_lshlrev_b32 v62, 16, v61
        v_and_b32 v63, 0xffff0000, v61
        v_rcp_f32 v{ra}, v62
        v_rcp_f32 v{rb}, v63
        """)
    a("s_waitcnt vmcnt(10)")
    for ch in range(2):
        for p in range(4):
            x = 8 + 4 * ch + p
            u = 64 + 4 * ch + p
            ma, mb = 44 + 2 * p, 45 + 2 * p
            ra, rb = 52 + 2 * p, 53 + 2 * p
            a(f"""
            v_lshlrev_b32 v60, 16, v{x}
            v_and_b32 v61, 0xffff0000, v{x}
            v_sub_f32 v60, v60, v{ma}
            v_sub_f32 v61, v61, v{mb}
            v_cvt_pk_bf16_f32 v62, v60, v61
            v_lshlrev_b32 v60, 16, v62
            v_and_b32 v61, 0xffff0000, v62
            v_mul_f32 v60, v60, v{ra}
            v_mul_f32 v61, v61, v{rb}
            v_cvt_pk_bf16_f32 v{u}, v60, v61
            """)
    a(f"""
    ds_write_b128 v3, v[64:67] offset:{UB+UPAD}
    ds_write_b128 v3, v[68:71] offset:{UB+US+UPAD}
    ds_write_b128 v3, v[8:11] offset:{XB}
    ds_write_b128 v3, v[12:15] offset:{XB+4096}
    """)
    ACC = 72
    G0 = 104
    FB = 236
    NFB = 4
    for r in range(32):
        a(f"v_mov_b32 v{ACC+r}, 0")
    a("""
    s_waitcnt vmcnt(0) lgkmcnt(0)
    s_barrier
    """)
    ops = []

    def issue_G(j):
        a(f"ds_read_b128 v[{G0+4*j}:{G0+4*j+3}], v38 offset:{128*j}")
        ops.append(("G", j))

    def issue_F(t):
        b = FB + 4 * (t % NFB)
        a(f"ds_read_b64 v[{b}:{b+1}], v39 offset:{4096-128*t}")
        a(f"ds_read_b64 v[{b+2}:{b+3}], v39 offset:{4096-128*t+8}")
        ops.append(("F", t)); ops.append(("F", t))

    done_upto = [0]

    def wait_for(tags):
        last = max(i for i, o in enumerate(ops) if o in tags)
        if last < done_upto[0]:
            return
        n = len(ops) - 1 - last
        assert n <= 15
        a(f"s_waitcnt lgkmcnt({n})")
        done_upto[0] = last + 1

    pend = []
    gorder = [[4 + 4 * c for c in range(8)], [3 + 4 * c for c in range(8)], [2 + 4 * c for c in range(8)],
              [1 + 4 * c for c in range(8)], [0]]
    issue_F(0)
    for j in gorder[0]:
        issue_G(j)
    issue_F(1)
    nextF = 2
    for t in range(33):
        cmin = max(0, -(-(t - 4) // 4))
        todo = []
        if t + 1 < len(gorder):
            todo += [("G", j) for j in gorder[t + 1]]
        if nextF <= 32 and nextF <= t + 2:
            todo.append(("F", nextF)); nextF += 1
        b = FB + 4 * (t % NFB)
        cs = list(range(cmin, 8))
        for k, c in enumerate(cs):
            j = 4 - t + 4 * c
            wait_for({("F", t), ("G", j)})
            a(f"v_mfma_f32_16x16x32_bf16 v[{ACC+4*c}:{ACC+4*c+3}], v[{b}:{b+3}], v[{G0+4*j}:{G0+4*j+3}], v[{ACC+4*c}:{ACC+4*c+3}]")
            nper = -(-len(todo) // max(1, len(cs) - k))
            for _ in range(nper):
                if todo:
                    kind, x = todo.pop(0)
                    need = 2 if kind == "F" else 1
                    if len(ops) - done_upto[0] + need > 15:
                        n = 15 - need
                        a(f"s_waitcnt lgkmcnt({n})")
                        done_upto[0] = len(ops) - n
                    if kind == "F":
                        issue_F(x)
                    else:
                        issue_G(x)
        assert not todo
    a(f"""
    s_waitcnt lgkmcnt(0)
    s_lshl_b32 s25, s3, 12
    s_add_u32 s25, s25, {RB}
    v_add_u32 v43, s25, v5
    s_xor_b32 s26, s3, 1
    s_lshl_b32 s26, s26, 12
    s_add_u32 s26, s26, {RB}
    v_add_u32 v60, s26, v5
    s_mul_i32 s27, s17, {US}
    s_add_u32 s27, s27, {UB + UPAD}
    v_add_u32 v61, s27, v42
    s_lshl_b32 s27, s17, 12
    s_add_u32 s27, s27, {XB}
    v_add_u32 v62, s27, v42
    s_lshl_b32 s30, s16, 16
    s_and_b32 s31, s16, 0xffff0000
    s_cmp_eq_u32 s17, 0
    s_cselect_b32 s30, s30, s31
    s_lshl_b32 s31, s19, 12
    s_add_u32 s31, s31, s34
    s_cmp_eq_u32 s18, 0
    s_cbranch_scc0 Lconv_ep1
    """)
    for role in range(2):
        if role == 1:
            a("Lconv_ep1:")
        keep = [0, 1, 2, 3] if role == 0 else [4, 5, 6, 7]
        give = [4, 5, 6, 7] if role == 0 else [0, 1, 2, 3]
        for k, c in enumerate(give):
            a(f"ds_write_b128 v43, v[{ACC+4*c}:{ACC+4*c+3}] offset:{1024*k}")
        for k, c in enumerate(keep):
            a(f"ds_read_b64 v[{104+2*k}:{105+2*k}], v61 offset:{512*c}")
            a(f"ds_read_b64 v[{112+2*k}:{113+2*k}], v62 offset:{512*c}")
        a("""
        s_waitcnt lgkmcnt(0)
        s_barrier
        """)
        for k in range(4):
            a(f"ds_read_b128 v[{120+4*k}:{123+4*k}], v60 offset:{1024*k}")
        for k in range(4):
            for h in range(2):
                u = 104 + 2 * k + h
                t0, t1 = 136 + 4 * k + 2 * h, 137 + 4 * k + 2 * h
                a(f"""
                v_lshlrev_b32 v{t0}, 16, v{u}
                v_and_b32 v{t1}, 0xffff0000, v{u}
                v_mul_f32 v{t0}, s30, v{t0}
                v_mul_f32 v{t1}, s30, v{t1}
                v_cvt_pk_bf16_f32 v63, v{t0}, v{t1}
                v_lshlrev_b32 v{t0}, 16, v63
                v_and_b32 v{t1}, 0xffff0000, v63
                """)
        for k, c in enumerate(keep):
            a(f"s_waitcnt lgkmcnt({3-k})")
            for h in range(2):
                y0, y1 = ACC + 4 * c + 2 * h, ACC + 4 * c + 2 * h + 1
                p0, p1 = 120 + 4 * k + 2 * h, 121 + 4 * k + 2 * h
                t0, t1 = 136 + 4 * k + 2 * h, 137 + 4 * k + 2 * h
                x = 112 + 2 * k + h
                o = 152 + 2 * k + h
                a(f"""
                v_add_f32 v{y0}, v{y0}, v{p0}
                v_add_f32 v{y1}, v{y1}, v{p1}
                v_cvt_pk_bf16_f32 v63, v{y0}, v{y1}
                v_lshlrev_b32 v{y0}, 16, v63
                v_and_b32 v{y1}, 0xffff0000, v63
                v_add_f32 v{y0}, v{y0}, v{t0}
                v_add_f32 v{y1}, v{y1}, v{t1}
                v_cvt_pk_bf16_f32 v63, v{y0}, v{y1}
                v_lshlrev_b32 v{y0}, 16, v63
                v_and_b32 v{y1}, 0xffff0000, v63
                v_lshlrev_b32 v{t0}, 16, v{x}
                v_and_b32 v{t1}, 0xffff0000, v{x}
                v_add_f32 v{y0}, v{y0}, v{t0}
                v_add_f32 v{y1}, v{y1}, v{t1}
                v_cvt_pk_bf16_f32 v{o}, v{y0}, v{y1}
                """)
            a(f"buffer_store_dwordx2 v[{152+2*k}:{153+2*k}], v42, s[8:11], s31 offen offset:{512*c}")
        if role == 0:
            a("s_branch Lconv_fin")
    a("Lconv_fin:")
    if stamps:
        a(f"""
        s_waitcnt vmcnt(0) lgkmcnt(0)
        s_memrealtime s[92:93]
        s_waitcnt lgkmcnt(0)
        v_lshrrev_b32 v2, 6, v255
        v_lshlrev_b32 v2, 4, v2
        v_and_b32 v3, 63, v255
        v_mov_b32 v0, s90
        v_mov_b32 v1, s92
        s_lshl_b32 s94, s2, 6
        s_add_u32 s94, s94, s87
        v_cmp_eq_u32 vcc, 0, v3
        s_and_saveexec_b64 s[88:89], vcc
        buffer_store_dwordx2 v[0:1], v2, s[8:11], s94 offen
        """)
    a("""
    Lconv_end:
    s_endpgm
    """)
    return kd("conv1_kernel", 256) + kd("conv2_kernel", 256)
```

```python
from common import *
import math

NWG = 224
SB = 131072
LDS = SB + 8192

C1 = -2.0 * math.sqrt(2.0 / math.pi) * 1.4426950408889634
C2 = C1 * 0.044715


def gen(a, stamps=False, idx=(2, 5)):
    for li, (name, xin, hout) in enumerate([("gemm1a_kernel", X1T, HF1), ("gemm1b_kernel", X3T, HF2)]):
        a.head(name)
        if stamps:
            stamp_start(a)
            a(f"s_mov_b32 s87, {STAMPS + idx[li] * 0x10000:#x}")
        a(f"""
        s_mov_b32 s32, {xin:#x}
        s_mov_b32 s33, {hout:#x}
        s_branch Lg1_body
        """)
    a(".p2align 8")
    a("Lg1_body:")
    a(f"""
    s_cmp_ge_u32 s2, {NWG}
    s_cbranch_scc1 Lg1_end
    s_load_dwordx2 s[4:5], s[0:1], {KA_WS}
    s_load_dwordx2 s[6:7], s[0:1], {KA_B1}
    v_mov_b32 v255, v0
    v_and_b32 v1, 63, v0            ; lane
    v_lshrrev_b32 v2, 6, v0         ; wave
    v_lshlrev_b32 v3, 4, v1         ; lane*16
    v_readfirstlane_b32 s3, v2
    s_and_b32 s12, s2, 7
    s_lshr_b32 s13, s2, 3
    s_lshr_b32 s14, s12, 1
    s_lshl_b32 s14, s14, 2
    s_and_b32 s15, s13, 3
    s_add_u32 s14, s14, s15         ; tg
    s_and_b32 s15, s12, 1
    s_mul_i32 s15, s15, 7
    s_lshr_b32 s16, s13, 2
    s_add_u32 s15, s15, s16         ; fg
    s_lshl_b32 s16, s15, 2
    s_add_u32 s16, s16, s3          ; ft
    s_mul_i32 s17, s16, {33*1024}
    s_add_u32 s17, s17, {W1F}
    v_lshrrev_b32 v4, 3, v1
    v_and_b32 v5, 7, v1
    v_bfe_u32 v6, v1, 4, 1
    v_lshlrev_b32 v6, 2, v6
    v_xor_b32 v5, v5, v6
    v_lshlrev_b32 v4, 12, v4
    v_lshl_add_u32 v4, v5, 4, v4    ; vD
    s_lshl_b32 s18, s14, 8
    s_add_u32 s18, s18, s32
    s_lshl_b32 s19, s3, 15          ; w*32768 (octet w)
    s_add_u32 s18, s18, s19
    s_lshl_b32 s19, s3, 10
    s_waitcnt lgkmcnt(0)
    """)
    a.srd(8, 4, WS_BYTES)
    a.srd(20, 6, 1792 * 2)
    vm = []

    def dma(j, hh):
        a(f"""
        s_add_u32 m0, s19, {hh*65536 + j*4096}
        s_add_u32 s24, s18, {j*131072 + hh*128}
        buffer_load_dwordx4 v4, s[8:11], s24 offen lds
        """)
        vm.append(("D", j, hh))

    def wload(ks):
        if ks % 4 == 0:
            a(f"s_add_u32 s25, s17, {(ks//4)*4096}")
        a(f"buffer_load_dwordx4 a[{4*ks}:{4*ks+3}], v3, s[8:11], s25 offen offset:{(ks%4)*1024}")
        vm.append(("W", ks))

    def issue_chunk(c):
        dma(2 * c, 0); dma(2 * c + 1, 0)
        for ks in range(4 * c, 4 * c + 4):
            wload(ks)
        dma(2 * c, 1); dma(2 * c + 1, 1)

    a(f"""
    v_lshrrev_b32 v5, 5, v1         ; h / g
    v_lshlrev_b32 v6, 3, v5         ; h*8 bytes
    s_lshl_b32 s26, s16, 6
    """)
    for q in range(4):
        a(f"buffer_load_dwordx2 v[{8+2*q}:{9+2*q}], v6, s[20:23], s26 offen offset:{16*q}")
        vm.append(("B", q))
    for c in range(7):
        issue_chunk(c)
    a(f"""
    v_bfe_u32 v6, v1, 2, 2          ; r
    v_and_b32 v7, 3, v1             ; c
    v_bfe_u32 v16, v1, 4, 1         ; th
    v_lshlrev_b32 v17, 10, v5       ; g*1024
    v_lshl_add_u32 v17, v6, 7, v17  ; + r*128
    v_lshl_add_u32 v17, v16, 5, v17 ; + 32 th
    v_lshl_add_u32 v17, v7, 3, v17  ; + 8c
    v_lshrrev_b32 v6, 1, v6         ; r>>1
    v_lshl_add_u32 v20, v6, 6, v17
    v_xor_b32 v6, 1, v6
    v_lshl_add_u32 v21, v6, 6, v17
    v_add_u32 v22, 0x10000, v20
    v_add_u32 v23, 0x10000, v21
    s_lshl_b32 s27, s3, 11
    v_add_u32 v24, s27, v20
    v_add_u32 v25, s27, v21
    v_add_u32 v26, s27, v22
    v_add_u32 v27, s27, v23
    v_mov_b32 v28, 0x3f803f80
    """)
    ACC = 64
    XB = 128
    NXB = 8
    SBUF = 160
    ST = 32
    for r in range(64):
        a(f"v_mov_b32 v{ACC+r}, 0")
    for r in range(8):
        a(f"v_mov_b32 v{ST+r}, 0")

    for c in range(8):
        need = [i for i, t in enumerate(vm) if (t[0] == "D" and t[1] in (2 * c, 2 * c + 1)) or (t[0] == "W" and t[1] // 4 == c)]
        n = len(vm) - 1 - max(need)
        a(f"s_waitcnt vmcnt({n})")
        a("s_barrier")
        if c == 0:
            issue_chunk(7)
            wload(32)
        items = [(ks, j) for ks in range(4 * c, 4 * c + 4) for j in range(4)]
        lds = []

        def rd(i):
            ks, j = items[i]
            b = XB + 4 * (i % NXB)
            a(f"ds_read_b64_tr_b16 v[{b}:{b+1}], v{20+j} offset:{ks*2048}")
            a(f"ds_read_b64_tr_b16 v[{b+2}:{b+3}], v{20+j} offset:{ks*2048+512}")
            lds.append(("X", i)); lds.append(("X", i))

        def rds(j):
            b = SBUF + 4 * j
            a(f"ds_read_b64_tr_b16 v[{b}:{b+1}], v{24+j} offset:{4*c*2048}")
            a(f"ds_read_b64_tr_b16 v[{b+2}:{b+3}], v{24+j} offset:{4*c*2048+512}")
            lds.append(("S", j)); lds.append(("S", j))

        def wait(tag):
            last = max(i for i, t in enumerate(lds) if t == tag)
            n = len(lds) - 1 - last
            assert n <= 15
            a(f"s_waitcnt lgkmcnt({n})")

        PF = 5
        for i in range(PF):
            rd(i)
        for i, (ks, j) in enumerate(items):
            wait(("X", i))
            b = XB + 4 * (i % NXB)
            a(f"v_mfma_f32_32x32x16_bf16 v[{ACC+16*j}:{ACC+16*j+15}], a[{4*ks}:{4*ks+3}], v[{b}:{b+3}], v[{ACC+16*j}:{ACC+16*j+15}]")
            if i + PF < len(items):
                rd(i + PF)
            elif i + PF - len(items) < 4:
                rds(i + PF - len(items))
        a("s_waitcnt lgkmcnt(0)")
        for j in range(4):
            for r in range(4):
                b = SBUF + 4 * j + r
                a(f"""
                v_dot2_f32_bf16 v{ST+2*j}, v{b}, v28, v{ST+2*j}
                v_dot2_f32_bf16 v{ST+2*j+1}, v{b}, v{b}, v{ST+2*j+1}
                """)
    a(f"""
    s_nop 2
    v_lshlrev_b32 v29, 3, v0
    v_add_u32 v29, {SB}, v29
    """)
    for j in range(4):
        a(f"ds_write_b64 v29, v[{ST+2*j}:{ST+2*j+1}] offset:{2048*j}")
    a(f"""
    v_and_b32 v30, 31, v1
    v_lshlrev_b32 v30, 3, v30
    v_add_u32 v30, {SB}, v30
    """)
    for q in range(4):
        for h in range(2):
            a(f"""
            v_lshlrev_b32 v{40+4*q+2*h}, 16, v{8+2*q+h}
            v_and_b32 v{41+4*q+2*h}, 0xffff0000, v{8+2*q+h}
            """)
    a(f"""
    s_mov_b32 s28, {fhex(1.0/512)}
    s_mov_b32 s29, {fhex(1e-5)}
    s_mov_b32 s30, {fhex(C1)}
    s_mov_b32 s31, {fhex(C2)}
    s_waitcnt vmcnt(0) lgkmcnt(0)
    s_barrier
    """)
    for j in range(4):
        T = 128
        for p in range(8):
            a(f"ds_read_b64 v[{T+2*p}:{T+2*p+1}], v30 offset:{2048*j + 256*p}")
        a("s_waitcnt lgkmcnt(0)")
        a(f"""
        v_add_f32 v{T}, v{T}, v{T+2}
        v_add_f32 v{T+1}, v{T+1}, v{T+3}
        v_add_f32 v{T+4}, v{T+4}, v{T+6}
        v_add_f32 v{T+5}, v{T+5}, v{T+7}
        v_add_f32 v{T+8}, v{T+8}, v{T+10}
        v_add_f32 v{T+9}, v{T+9}, v{T+11}
        v_add_f32 v{T+12}, v{T+12}, v{T+14}
        v_add_f32 v{T+13}, v{T+13}, v{T+15}
        v_add_f32 v{T}, v{T}, v{T+4}
        v_add_f32 v{T+1}, v{T+1}, v{T+5}
        v_add_f32 v{T+8}, v{T+8}, v{T+12}
        v_add_f32 v{T+9}, v{T+9}, v{T+13}
        v_add_f32 v{T}, v{T}, v{T+8}
        v_add_f32 v{T+1}, v{T+1}, v{T+9}
        v_mul_f32 v{T}, s28, v{T}                 ; mean
        v_mul_f32 v{T+1}, s28, v{T+1}
        v_fma_f32 v{T+1}, -v{T}, v{T}, v{T+1}
        v_max_f32 v{T+1}, 0, v{T+1}               ; var
        v_cvt_pk_bf16_f32 v{T+2}, v{T}, v{T+1}
        v_lshlrev_b32 v{T+3}, 16, v{T+2}          ; m_hi f32
        v_and_b32 v{T+4}, 0xffff0000, v{T+2}      ; v1
        v_sub_f32 v{T+5}, v{T}, v{T+3}
        v_add_f32 v{T+4}, s29, v{T+4}
        v_cvt_pk_bf16_f32 v{T+6}, v{T+5}, v{T+4}
        v_and_b32 v{T+4}, 0xffff0000, v{T+6}
        v_sqrt_f32 v{T+4}, v{T+4}
        v_xor_b32 v{T+2}, 0x8000, v{T+2}
        v_xor_b32 v{T+6}, 0x8000, v{T+6}
        v_cvt_pk_bf16_f32 v{T+4}, v{T+4}, v{T+4}
        v_and_b32 v{T+4}, 0xffff0000, v{T+4}      ; s1
        v_rcp_f32 v{T+7}, v{T+4}
        v_and_b32 v{T+2}, 0xffff, v{T+2}
        v_and_b32 v{T+6}, 0xffff, v{T+6}
        v_mul_f32 v{T+8}, v{T+1}, v{T+7}
        v_mul_f32 v{T+8}, v{T+8}, v{T+7}          ; var/s1^2
        v_cvt_pk_bf16_f32 v{T+8}, v{T+8}, v{T+8}
        v_and_b32 v{T+8}, 0xffff0000, v{T+8}
        v_add_f32 v{T+8}, s29, v{T+8}
        v_cvt_pk_bf16_f32 v{T+8}, v{T+8}, v{T+8}
        v_and_b32 v{T+8}, 0xffff0000, v{T+8}
        v_sqrt_f32 v{T+8}, v{T+8}
        v_lshl_or_b32 v{160+4*j}, v{T+2}, 16, v{T+2}
        v_lshl_or_b32 v{161+4*j}, v{T+6}, 16, v{T+2}
        v_cvt_pk_bf16_f32 v{T+8}, v{T+8}, v{T+8}
        v_and_b32 v{T+8}, 0xffff0000, v{T+8}      ; s2
        v_rcp_f32 v{T+8}, v{T+8}
        v_lshl_or_b32 v{162+4*j}, v{T+6}, 16, v{T+6}
        v_mov_b32 v{163+4*j}, 0
        v_mul_f32 v{56+j}, v{T+7}, v{T+8}         ; r
        s_nop 0
        v_mfma_f32_32x32x16_bf16 v[{ACC+16*j}:{ACC+16*j+15}], a[128:131], v[{160+4*j}:{163+4*j}], v[{ACC+16*j}:{ACC+16*j+15}]
        """)
    a(f"""
    s_mul_i32 s34, s14, {4*112*1024}
    s_lshl_b32 s35, s16, 11
    s_add_u32 s34, s34, s35
    s_add_u32 s34, s34, s33
    s_nop 7
    s_nop 3
    """)
    for j in range(4):
        A = ACC + 16 * j
        for i in range(0, 16, 2):
            x0, x1 = A + i, A + i + 1
            t0, t1 = 176 + (i % 8), 177 + (i % 8)
            a(f"""
            v_fma_f32 v{x0}, v{x0}, v{56+j}, v{40+i}
            v_fma_f32 v{x1}, v{x1}, v{56+j}, v{41+i}
            v_mul_f32 v{t0}, v{x0}, v{x0}
            v_mul_f32 v{t1}, v{x1}, v{x1}
            v_mov_b32 v184, s30
            v_fma_f32 v{t0}, v{t0}, s31, v184
            v_fma_f32 v{t1}, v{t1}, s31, v184
            v_mul_f32 v{t0}, v{t0}, v{x0}
            v_mul_f32 v{t1}, v{t1}, v{x1}
            v_exp_f32 v{t0}, v{t0}
            v_exp_f32 v{t1}, v{t1}
            s_nop 0
            v_add_f32 v{t0}, 1.0, v{t0}
            v_add_f32 v{t1}, 1.0, v{t1}
            v_rcp_f32 v{t0}, v{t0}
            v_rcp_f32 v{t1}, v{t1}
            s_nop 0
            v_mul_f32 v{x0}, v{x0}, v{t0}
            v_mul_f32 v{x1}, v{x1}, v{t1}
            v_cvt_pk_bf16_f32 v{192+8*j+i//2}, v{x0}, v{x1}
            """)
        a(f"""
        s_add_u32 s35, s34, {j*112*1024}
        buffer_store_dwordx4 v[{192+8*j}:{195+8*j}], v3, s[8:11], s35 offen
        buffer_store_dwordx4 v[{196+8*j}:{199+8*j}], v3, s[8:11], s35 offen offset:1024
        """)
    if stamps:
        a(f"""
        s_waitcnt vmcnt(0) lgkmcnt(0)
        s_memrealtime s[92:93]
        s_waitcnt lgkmcnt(0)
        v_lshrrev_b32 v2, 6, v255
        v_lshlrev_b32 v2, 4, v2
        v_and_b32 v3, 63, v255
        v_mov_b32 v0, s90
        v_mov_b32 v1, s92
        s_lshl_b32 s94, s2, 6
        s_add_u32 s94, s94, s87
        v_cmp_eq_u32 vcc, 0, v3
        s_and_saveexec_b64 s[88:89], vcc
        buffer_store_dwordx2 v[0:1], v2, s[8:11], s94 offen
        """)
    a("""
    Lg1_end:
    s_endpgm
    """)
    return kd("gemm1a_kernel", 256 + 132, accum=256) + kd("gemm1b_kernel", 256 + 132, accum=256)
```

```python
from common import *

LDS = 4 * 3 * 4096
DEPTH = 14


def gen(a, stamps=False, idx=(3, 6)):
    for li, (name, hin, xin) in enumerate([("gemm2a_kernel", HF1, X1T), ("gemm2b_kernel", HF2, X3T)]):
        a.head(name)
        if stamps:
            stamp_start(a)
            a(f"s_mov_b32 s87, {STAMPS + idx[li] * 0x10000:#x}")
        a(f"""
        s_mov_b32 s32, {hin:#x}
        s_mov_b32 s33, {xin:#x}
        s_mov_b32 s36, {li}
        s_branch Lg2_body
        """)
    a(".p2align 8")
    a("Lg2_body:")
    a(f"""
    s_cmp_ge_u32 s2, 256
    s_cbranch_scc1 Lg2_end
    s_load_dwordx2 s[4:5], s[0:1], {KA_WS}
    s_load_dwordx2 s[6:7], s[0:1], {KA_B2}
    s_load_dwordx2 s[40:41], s[0:1], {KA_OUT}
    v_and_b32 v1, 63, v0            ; lane
    v_lshrrev_b32 v2, 6, v0         ; wave
    v_lshlrev_b32 v3, 4, v1         ; lane*16
    v_readfirstlane_b32 s3, v2
    s_and_b32 s12, s2, 7
    s_lshr_b32 s13, s2, 3
    s_lshl_b32 s14, s12, 2
    s_and_b32 s15, s13, 3
    s_add_u32 s14, s14, s15         ; ty
    s_lshr_b32 s15, s13, 2          ; cx
    s_lshr_b32 s16, s3, 1           ; wa = w>>1
    s_and_b32 s17, s3, 1            ; wb = w&1
    s_mul_i32 s18, s3, {28*1024}
    s_lshl_b32 s19, s15, 1
    s_add_u32 s20, s19, s16
    s_xor_b32 s21, s20, 1
    s_mul_i32 s22, s20, {112*1024}
    s_mul_i32 s23, s21, {112*1024}
    s_add_u32 s22, s22, s18
    s_add_u32 s23, s23, s18
    s_add_u32 s22, s22, {W2F}
    s_add_u32 s23, s23, {W2F}
    s_lshl_b32 s19, s14, 1
    s_add_u32 s24, s19, s17
    s_xor_b32 s25, s24, 1
    s_mul_i32 s26, s24, {112*1024}
    s_mul_i32 s27, s25, {112*1024}
    s_add_u32 s26, s26, s18
    s_add_u32 s27, s27, s18
    s_add_u32 s26, s26, s32
    s_add_u32 s27, s27, s32
    v_add_u32 v4, s22, v3
    v_add_u32 v5, s23, v3
    v_add_u32 v6, s26, v3
    v_add_u32 v7, s27, v3
    s_waitcnt lgkmcnt(0)
    """)
    a.srd(8, 4, WS_BYTES)
    a.srd(28, 6, 1024)
    a.srd(44, 40, 0x200000)

    def ld(i):
        slot = (i % DEPTH) * 16
        if i % 4 == 0:
            a(f"s_mov_b32 s34, {(i//4)*4096}")
        for q in range(4):
            a(f"buffer_load_dwordx4 a[{slot+4*q}:{slot+4*q+3}], v{4+q}, s[8:11], s34 offen offset:{(i%4)*1024}")

    NPRE = 4
    for i in range(NPRE):
        ld(i)
    a(f"""
    v_lshrrev_b32 v32, 5, v1        ; h
    v_and_b32 v33, 31, v1           ; tok
    v_lshlrev_b32 v34, 3, v32       ; h*8
    s_lshl_b32 s35, s20, 6
    v_lshlrev_b32 v35, 14, v32
    v_lshl_add_u32 v35, v33, 1, v35
    s_lshl_b32 s37, s20, 17
    s_lshl_b32 s38, s24, 6
    s_add_u32 s37, s37, s38
    s_add_u32 s38, s37, s33
    """)
    for q in range(4):
        a(f"buffer_load_dwordx2 v[{8+2*q}:{9+2*q}], v34, s[28:31], s35 offen offset:{16*q}")
    for i in range(16):
        chl = 8 * (i >> 2) + (i & 3)
        a(f"""
        s_add_u32 s39, s38, {chl*4096}
        buffer_load_ushort v{16+i}, v35, s[8:11], s39 offen
        """)
    NEP = 20
    nissued = NPRE
    while (nissued + 1) * 4 + NEP <= 63 and nissued < DEPTH:
        ld(nissued); nissued += 1
    ACC = 64
    for r in range(64):
        a(f"v_mov_b32 v{ACC+r}, 0")
    for i in range(28):
        after = (nissued - 1 - i) * 4 + (NEP if i < NPRE else 0)
        a(f"s_waitcnt vmcnt({after})")
        slot = (i % DEPTH) * 16
        for aa in range(2):
            for bb in range(2):
                q = 2 * aa + bb
                a(f"v_mfma_f32_32x32x16_bf16 v[{ACC+16*q}:{ACC+16*q+15}], a[{slot+4*aa}:{slot+4*aa+3}], a[{slot+8+4*bb}:{slot+8+4*bb+3}], v[{ACC+16*q}:{ACC+16*q+15}]")
        while nissued < 28 and nissued - DEPTH <= i and ((nissued - i) * 4 + (NEP if i + 1 < NPRE else 0)) <= 63:
            ld(nissued); nissued += 1
    a(f"""
    s_nop 7
    s_nop 3
    """)
    for q in range(1, 4):
        a(f"""
        s_xor_b32 s39, s3, {q}
        s_mul_i32 s39, s39, 12288
        s_add_u32 s39, s39, {(q-1)*4096}
        v_add_u32 v36, s39, v3
        """)
        for r in range(4):
            a(f"ds_write_b128 v36, v[{ACC+16*q+4*r}:{ACC+16*q+4*r+3}] offset:{1024*r}")
    a(f"""
    s_mul_i32 s39, s3, 12288
    v_add_u32 v36, s39, v3
    """)
    for q in range(4):
        for h in range(2):
            a(f"""
            v_lshlrev_b32 v{40+4*q+2*h}, 16, v{8+2*q+h}
            v_and_b32 v{41+4*q+2*h}, 0xffff0000, v{8+2*q+h}
            """)
    for i in range(16):
        a(f"v_lshlrev_b32 v{16+i}, 16, v{16+i}")
    a("""
    s_waitcnt lgkmcnt(0)
    s_barrier
    """)
    for q in range(1, 4):
        for r in range(4):
            a(f"ds_read_b128 v[{ACC+16*q+4*r}:{ACC+16*q+4*r+3}], v36 offset:{(q-1)*4096+1024*r}")
    a("s_waitcnt lgkmcnt(0)")
    for i in range(16):
        a(f"""
        v_add_f32 v{ACC+i}, v{ACC+i}, v{ACC+16+i}
        v_add_f32 v{ACC+32+i}, v{ACC+32+i}, v{ACC+48+i}
        """)
    for i in range(16):
        a(f"v_add_f32 v{ACC+i}, v{ACC+i}, v{ACC+32+i}")
    for i in range(0, 16, 2):
        x0, x1 = ACC + i, ACC + i + 1
        a(f"""
        v_cvt_pk_bf16_f32 v37, v{x0}, v{x1}
        v_lshlrev_b32 v{x0}, 16, v37
        v_and_b32 v{x1}, 0xffff0000, v37
        v_add_f32 v{x0}, v{x0}, v{40+i}
        v_add_f32 v{x1}, v{x1}, v{41+i}
        v_cvt_pk_bf16_f32 v37, v{x0}, v{x1}
        v_lshlrev_b32 v{x0}, 16, v37
        v_and_b32 v{x1}, 0xffff0000, v37
        v_add_f32 v{x0}, v{x0}, v{16+i}
        v_add_f32 v{x1}, v{x1}, v{17+i}
        v_cvt_pk_bf16_f32 v{56+i//2}, v{x0}, v{x1}
        """)
    a("""
    s_cmp_eq_u32 s36, 0
    s_cbranch_scc0 Lg2_final
    """)
    a(f"s_add_u32 s38, s37, {X2T}")
    for i in range(16):
        chl = 8 * (i >> 2) + (i & 3)
        op = "buffer_store_short" if i % 2 == 0 else "buffer_store_short_d16_hi"
        a(f"""
        s_add_u32 s39, s38, {chl*4096}
        {op} v{56+i//2}, v35, s[8:11], s39 offen
        """)
    a("""
    v_mov_b32 v38, 0
    v_mov_b32 v39, 0
    v_mov_b32 v37, 0x3f803f80
    """)
    for p in range(8):
        a(f"""
        v_dot2_f32_bf16 v38, v{56+p}, v37, v38
        v_dot2_f32_bf16 v39, v{56+p}, v{56+p}, v39
        """)
    a(f"""
    v_lshlrev_b32 v36, 3, v33
    v_lshl_add_u32 v36, v32, 2, v36
    s_lshl_b32 s39, s24, 8
    s_add_u32 s39, s39, {STATS2}
    s_nop 1
    v_permlane32_swap_b32 v38, v39
    s_nop 1
    v_add_f32 v38, v38, v39
    buffer_atomic_add_f32 v38, v36, s[8:11], s39 offen
    s_branch Lg2_fin
    Lg2_final:
    v_lshlrev_b32 v36, 10, v33
    v_add_u32 v36, v36, v34
    s_lshl_b32 s39, s24, 15
    s_add_u32 s39, s39, s35
    """)
    for q in range(4):
        a(f"buffer_store_dwordx2 v[{56+2*q}:{57+2*q}], v36, s[44:47], s39 offen offset:{16*q}")
    a("Lg2_fin:")
    if stamps:
        a(f"""
        s_waitcnt vmcnt(0) lgkmcnt(0)
        s_memrealtime s[92:93]
        s_waitcnt lgkmcnt(0)
        v_lshlrev_b32 v2, 4, v2
        v_mov_b32 v3, v1
        v_mov_b32 v0, s90
        v_mov_b32 v1, s92
        s_lshl_b32 s94, s2, 6
        s_add_u32 s94, s94, s87
        v_cmp_eq_u32 vcc, 0, v3
        s_and_saveexec_b64 s[88:89], vcc
        buffer_store_dwordx2 v[0:1], v2, s[8:11], s94 offen
        """)
    a("""
    Lg2_end:
    s_endpgm
    """)
    return kd("gemm2a_kernel", 128 + DEPTH * 16, accum=128) + kd("gemm2b_kernel", 128 + DEPTH * 16, accum=128)
```

```python
import math
from common import *

N_KGEN = 512
WG_XT = 512
WG_ST = 576
WG_W1 = 640
WG_W2 = 696
WG_Z = 752
N_PREP = 753
PREP_LDS = 18432

LOG2E = 1.4426950408889634
INV2PI = 1.0 / (2.0 * math.pi)
INV2PI_HI = struct.unpack("<f", struct.pack("<I", 0x3e22f983))[0]
INV2PI_LO = INV2PI - INV2PI_HI


def gen_prep(a, stamps=False, idx=0):
    a.head("prep_kernel")
    if stamps:
        stamp_start(a)
    a(f"""
    s_cmp_ge_u32 s2, {N_PREP}
    s_cbranch_scc1 Lprep_end
    s_load_dwordx2 s[4:5], s[0:1], {KA_WS}
    v_mov_b32 v127, v0
    v_and_b32 v1, 63, v0            ; lane
    v_lshrrev_b32 v2, 6, v0         ; wave
    s_nop 0
    v_readfirstlane_b32 s3, v2
    s_cmp_ge_u32 s2, {WG_XT}
    s_cbranch_scc1 Lprep_other
    """)
    PB, TB, TBH = 0, 4096, 16384
    a(f"""
    s_load_dwordx8 s[12:19], s[0:1], {KA_LOGA}
    s_load_dwordx2 s[20:21], s[0:1], {KA_LOGDT}
    v_and_b32 v3, 31, v0            ; n_local
    v_lshl_add_u32 v4, v2, 5, v3    ; n
    s_lshl_b32 s22, s2, 8
    v_lshl_add_u32 v4, v4, 1, s22
    s_lshl_b32 s23, s2, 1
    v_mov_b32 v9, s23
    s_waitcnt lgkmcnt(0)
    global_load_ushort v5, v4, s[12:13]
    global_load_ushort v6, v4, s[14:15]
    global_load_ushort v7, v4, s[16:17]
    global_load_ushort v8, v4, s[18:19]
    global_load_ushort v9, v9, s[20:21]
    """)
    a.srd(8, 4, WS_BYTES)
    a(f"""
    v_and_b32 v30, 15, v1
    v_lshrrev_b32 v31, 4, v1
    ; pV = 8*i
    v_lshlrev_b32 v32, 3, v30
    v_cvt_f32_u32 v32, v32
    ; pA0 = 128*(i>>3) + (i&7)
    v_lshrrev_b32 v40, 3, v30
    v_and_b32 v41, 7, v30
    v_lshl_add_u32 v33, v40, 7, v41
    v_cvt_f32_u32 v33, v33
    v_lshrrev_b32 v42, 2, v30
    v_and_b32 v43, 3, v30
    v_lshlrev_b32 v42, 7, v42
    v_lshl_add_u32 v42, v43, 1, v42
    v_add_u32 v42, 0x100, v42
    v_lshrrev_b32 v43, 1, v41
    v_and_b32 v44, 1, v41
    v_lshlrev_b32 v43, 7, v43
    v_lshl_add_u32 v43, v44, 2, v43
    v_add_u32 v43, 0x200, v43
    v_cmp_gt_u32 vcc, 8, v30
    s_nop 1
    v_cndmask_b32 v34, v43, v42, vcc
    v_cvt_f32_u32 v34, v34
    v_lshlrev_b32 v42, 7, v30
    v_add_u32 v42, 0x400, v42
    v_mov_b32 v43, 0x800
    v_cndmask_b32 v35, v43, v42, vcc
    v_cvt_f32_u32 v35, v35
    v_lshlrev_b32 v36, 10, v2
    v_lshl_add_u32 v37, v31, 5, v36
    v_lshl_add_u32 v36, v3, 5, v36
    v_mul_u32_u24 v45, 3072, v2
    v_add_u32 v45, {TB}, v45
    v_lshrrev_b32 v42, 1, v31
    v_and_b32 v43, 1, v31
    v_lshlrev_b32 v42, 7, v42
    v_lshl_add_u32 v42, v43, 2, v42
    v_lshl_add_u32 v42, v30, 3, v42
    v_lshl_add_u32 v46, v42, 2, v45          ; addr m0
    v_cmp_gt_u32 vcc, 2, v31
    v_lshlrev_b32 v42, 2, v30
    v_lshlrev_b32 v43, 1, v30
    v_cndmask_b32 v42, v43, v42, vcc
    v_lshl_add_u32 v42, v31, 6, v42
    v_add_u32 v42, 0x100, v42
    v_lshl_add_u32 v47, v42, 2, v45          ; addr m1 A
    v_mov_b32 v43, 128
    v_mov_b32 v44, 8
    v_cndmask_b32 v43, v43, v44, vcc
    v_add_u32 v48, v47, v43                  ; addr m1 B
    ; m2: q = 512 + 64kk + 16r + b
    v_lshl_add_u32 v42, v31, 6, v30
    v_add_u32 v42, 0x200, v42
    v_lshl_add_u32 v49, v42, 2, v45
    """)
    a(f"""
    v_lshlrev_b32 v42, 3, v0
    v_sub_u32 v42, 2096, v42        ; l0 for e=0
    v_mov_b32 v44, {TBH + 2 * 768}
    s_movk_i32 s24, 17024
    """)
    for e in range(0, 8, 2):
        a(f"""
        v_subrev_u32 v50, {e}, v42
        v_subrev_u32 v51, {e+1}, v42
        v_cvt_f32_u32 v40, v50
        v_cvt_f32_u32 v41, v51
        v_cvt_pk_bf16_f32 v40, v40, v41
        v_lshrrev_b32 v41, 16, v40
        v_and_b32 v40, 0xffff, v40
        v_subrev_u32 v40, s24, v40
        v_subrev_u32 v41, s24, v41
        v_cmp_gt_u32 vcc, 128, v50
        s_nop 1
        v_cndmask_b32 v40, v40, v50, vcc
        v_cmp_gt_u32 vcc, 128, v51
        s_nop 1
        v_cndmask_b32 v41, v41, v51, vcc
        v_lshlrev_b32 v40, 1, v40
        v_lshlrev_b32 v41, 1, v41
        v_add_u32 v40, {TBH}, v40
        v_add_u32 v41, {TBH}, v41
        v_cmp_gt_u32 vcc, 0x800, v50
        s_nop 1
        v_cndmask_b32 v{52+e}, v44, v40, vcc
        v_cmp_gt_u32 vcc, 0x800, v51
        s_nop 1
        v_cndmask_b32 v{53+e}, v44, v41, vcc
        """)
    a("v_subrev_u32 v42, 0x800, v42")
    for e in range(8):
        a(f"""
        v_subrev_u32 v50, {e}, v42
        v_lshlrev_b32 v40, 1, v50
        v_add_u32 v40, {TBH}, v40
        v_cmp_gt_u32 vcc, 64, v50
        s_nop 1
        v_cndmask_b32 v{60+e}, v44, v40, vcc
        """)
    a(f"""
    s_mov_b32 s25, {fhex(INV2PI_HI)}
    s_waitcnt vmcnt(0)
    v_lshlrev_b32 v5, 16, v5
    v_lshlrev_b32 v6, 16, v6
    v_lshlrev_b32 v7, 16, v7
    v_lshlrev_b32 v8, 16, v8
    v_lshlrev_b32 v9, 16, v9
    v_mul_f32 v9, {fhex(LOG2E)}, v9
    v_mul_f32 v5, {fhex(LOG2E)}, v5
    v_exp_f32 v9, v9
    v_exp_f32 v5, v5
    s_nop 0
    v_cvt_pk_bf16_f32 v9, v9, v5
    v_and_b32 v5, 0xffff0000, v9
    v_lshlrev_b32 v9, 16, v9
    v_mul_f32 v5, v5, v9
    v_mul_f32 v16, {fhex(-LOG2E)}, v5     ; a2
    v_mul_f32 v6, v6, v9
    v_mul_f32 v11, s25, v6           ; hi
    v_fma_f32 v18, v6, s25, -v11     ; err
    v_fmac_f32 v18, {fhex(INV2PI_LO)}, v6
    v_and_b32 v17, 0xffffff00, v11   ; b2h
    v_sub_f32 v14, v11, v17
    v_add_f32 v18, v18, v14          ; b2l
    v_add_f32 v9, v9, v9             ; 2*dt
    v_mul_f32 v19, v7, v9            ; cr2
    v_mul_f32 v20, v8, v9            ; ci2
    ds_write_b128 v36, v[16:19]
    ds_write_b32 v36, v20 offset:16
    """)
    ACC = 100
    for r in range(12):
        a(f"v_mov_b32 v{ACC+r}, 0")
    a("s_waitcnt lgkmcnt(0)")

    def read_params(P, off):
        a(f"""
        ds_read_b128 v[{P}:{P+3}], v37 offset:{off}
        ds_read_b32 v{P+4}, v37 offset:{off+16}
        """)

    def ev(P, p, zr, zi, t):
        a(f"""
        v_mul_f32 v{t}, v{P}, v{p}
        v_mul_f32 v{t+1}, v{P+1}, v{p}
        v_exp_f32 v{t}, v{t}
        v_fract_f32 v{t+1}, v{t+1}
        v_fmac_f32 v{t+1}, v{P+2}, v{p}
        v_cos_f32 v{t+2}, v{t+1}
        v_sin_f32 v{t+3}, v{t+1}
        s_nop 0
        v_mul_f32 v{zr}, v{t}, v{t+2}
        v_mul_f32 v{zi}, v{t}, v{t+3}
        """)

    def step(P):
        ev(P, 32, 80, 81, 72)
        a(f"""
        v_mul_f32 v82, v{P+3}, v80
        v_mul_f32 v83, v{P+3}, v81
        v_fma_f32 v82, -v{P+4}, v81, v82
        v_fma_f32 v83, -v{P+4}, v80, -v83
        """)
        for m in range(3):
            zr, zi = 84 + 2 * m, 85 + 2 * m
            ev(P, 33 + m, zr, zi, 76)
            a(f"""
            s_nop 1
            v_mfma_f32_16x16x4_f32 v[{ACC+4*m}:{ACC+4*m+3}], v{zr}, v82, v[{ACC+4*m}:{ACC+4*m+3}]
            v_mfma_f32_16x16x4_f32 v[{ACC+4*m}:{ACC+4*m+3}], v{zi}, v83, v[{ACC+4*m}:{ACC+4*m+3}]
            """)

    P0, P1 = 90, 112
    read_params(P0, 0)
    a("s_mov_b32 s26, 0")
    a("Lkg_loop:")
    read_params(P1, 128)
    a("s_waitcnt lgkmcnt(2)")
    step(P0)
    a("v_add_u32 v37, 256, v37")
    read_params(P0, 0)
    a("s_waitcnt lgkmcnt(2)")
    step(P1)
    a("""
    s_add_u32 s26, s26, 1
    s_cmp_lt_u32 s26, 4
    s_cbranch_scc1 Lkg_loop
    s_nop 15
    """)
    a(f"""
    ds_write_b128 v46, v[{ACC}:{ACC+3}]
    ds_write_b64 v47, v[{ACC+4}:{ACC+5}]
    ds_write_b64 v48, v[{ACC+6}:{ACC+7}]
    ds_write_b32 v49, v{ACC+8}
    ds_write_b32 v49, v{ACC+9} offset:64
    ds_write_b32 v49, v{ACC+10} offset:128
    ds_write_b32 v49, v{ACC+11} offset:192
    v_lshlrev_b32 v40, 2, v0
    v_lshlrev_b32 v41, 1, v0
    v_mov_b32 v42, 0
    ds_write_b16 v44, v42
    s_waitcnt lgkmcnt(0)
    s_barrier
    """)
    for j in range(3):
        for w in range(4):
            a(f"ds_read_b32 v{72+4*j+w}, v40 offset:{TB + w*3072 + j*1024}")
    a("s_waitcnt lgkmcnt(0)")
    for j in range(3):
        b = 72 + 4 * j
        a(f"""
        v_add_f32 v{b}, v{b}, v{b+1}
        v_add_f32 v{b+2}, v{b+2}, v{b+3}
        v_add_f32 v{b}, v{b}, v{b+2}
        v_cvt_pk_bf16_f32 v{b}, v{b}, v{b}
        ds_write_b16 v41, v{b} offset:{TBH + j*512}
        """)
    a("""
    s_waitcnt lgkmcnt(0)
    s_barrier
    """)
    for e in range(8):
        a(f"ds_read_u16 v{72+e}, v{52+e}")
    a("s_waitcnt lgkmcnt(0)")
    for e in range(8):
        a(f"ds_read_u16 v{80+e}, v{60+e}")
    for e in range(4):
        a(f"v_lshl_or_b32 v{88+e}, v{73+2*e}, 16, v{72+2*e}")
    a(f"""
    s_mul_i32 s27, s2, {KSTRIDE}
    s_add_u32 s27, s27, {KBUF + 16}
    v_lshlrev_b32 v40, 4, v0
    buffer_store_dwordx4 v[88:91], v40, s[8:11], s27 offen
    s_waitcnt lgkmcnt(0)
    """)
    for e in range(4):
        a(f"v_lshl_or_b32 v{92+e}, v{81+2*e}, 16, v{80+2*e}")
    a(f"""
    s_add_u32 s27, s27, 4096
    v_cmp_gt_u32 vcc, 10, v0
    s_and_saveexec_b64 s[28:29], vcc
    s_cbranch_execz Lprep_fin
    buffer_store_dwordx4 v[92:95], v40, s[8:11], s27 offen
    s_branch Lprep_fin
    """)

    a(f"""
    Lprep_other:
    s_cmp_ge_u32 s2, {WG_ST}
    s_cbranch_scc1 Lprep_st
    """)
    a(f"""
    s_load_dwordx2 s[6:7], s[0:1], {KA_U}
    s_sub_u32 s20, s2, {WG_XT}
    s_lshl_b32 s20, s20, 2
    s_add_u32 s20, s20, s3
    s_and_b32 s21, s20, 7           ; cb
    s_lshr_b32 s22, s20, 3          ; tb
    s_lshl_b32 s23, s21, 6
    v_add_u32 v3, s23, v1           ; channel
    s_lshl_b32 s24, s22, 16
    v_lshlrev_b32 v4, 1, v3
    v_add_u32 v4, s24, v4
    v_lshlrev_b32 v5, 12, v3        ; channel*4096
    s_lshl_b32 s25, s22, 7
    s_add_u32 s25, s25, {X0T}
    s_waitcnt lgkmcnt(0)
    """)
    a.srd(8, 4, WS_BYTES)
    a.srd(12, 6, 0x200000)
    for half in range(2):
        for e in range(32):
            ee = half * 32 + e
            if ee % 4 == 0:
                a(f"s_mov_b32 s26, {(ee // 4) * 4096}")
            a(f"buffer_load_ushort v{16+ee}, v4, s[12:15], s26 offen offset:{(ee % 4) * 1024}")
    for o in range(8):
        a(f"s_waitcnt vmcnt({min(63, 56 - 8 * o + o)})")
        for j in range(4):
            a(f"v_lshl_or_b32 v{88+4*o+j}, v{16+8*o+2*j+1}, 16, v{16+8*o+2*j}")
        a(f"buffer_store_dwordx4 v[{88+4*o}:{88+4*o+3}], v5, s[8:11], s25 offen offset:{16*o}")
    a("s_branch Lprep_fin")

    a(f"""
    Lprep_st:
    s_cmp_ge_u32 s2, {WG_W1}
    s_cbranch_scc1 Lprep_w1
    s_load_dwordx2 s[6:7], s[0:1], {KA_U}
    s_sub_u32 s20, s2, {WG_ST}
    s_lshl_b32 s20, s20, 2
    s_add_u32 s20, s20, s3          ; wt
    s_lshl_b32 s20, s20, 3
    v_lshrrev_b32 v3, 3, v1
    v_add_u32 v3, s20, v3           ; row
    v_and_b32 v4, 7, v1             ; part
    v_lshlrev_b32 v5, 10, v3
    v_lshl_add_u32 v5, v4, 4, v5
    v_mov_b32 v6, 0x3f803f80
    v_mov_b32 v8, 0
    v_mov_b32 v9, 0
    s_waitcnt lgkmcnt(0)
    """)
    a.srd(8, 4, WS_BYTES)
    a.srd(12, 6, 0x200000)
    for j in range(8):
        a(f"buffer_load_dwordx4 v[{16+4*j}:{19+4*j}], v5, s[12:15], 0 offen offset:{128*j}")
    for j in range(8):
        a(f"s_waitcnt vmcnt({7-j})")
        for r in range(4):
            a(f"""
            v_dot2_f32_bf16 v8, v{16+4*j+r}, v6, v8
            v_dot2_f32_bf16 v9, v{16+4*j+r}, v{16+4*j+r}, v9
            """)
    a(f"""
    s_nop 3
    v_add_f32_dpp v8, v8, v8 quad_perm:[1,0,3,2] row_mask:0xf bank_mask:0xf
    v_add_f32_dpp v9, v9, v9 quad_perm:[1,0,3,2] row_mask:0xf bank_mask:0xf
    s_nop 1
    v_add_f32_dpp v8, v8, v8 quad_perm:[2,3,0,1] row_mask:0xf bank_mask:0xf
    v_add_f32_dpp v9, v9, v9 quad_perm:[2,3,0,1] row_mask:0xf bank_mask:0xf
    s_nop 1
    v_add_f32_dpp v8, v8, v8 row_half_mirror row_mask:0xf bank_mask:0xf
    v_add_f32_dpp v9, v9, v9 row_half_mirror row_mask:0xf bank_mask:0xf
    v_lshlrev_b32 v10, 3, v3
    s_mov_b32 s21, {STATS0}
    v_cmp_eq_u32 vcc, 0, v4
    s_and_saveexec_b64 s[28:29], vcc
    buffer_store_dwordx2 v[8:9], v10, s[8:11], s21 offen
    s_branch Lprep_fin
    """)

    a(f"""
    Lprep_w1:
    s_cmp_ge_u32 s2, {WG_W2}
    s_cbranch_scc1 Lprep_w2
    s_load_dwordx2 s[6:7], s[0:1], {KA_W1}
    s_sub_u32 s20, s2, {WG_W1}      ; ft
    v_and_b32 v3, 31, v1            ; f
    v_lshrrev_b32 v4, 5, v1         ; g
    v_mul_u32_u24 v5, 28672, v4
    s_lshl_b32 s21, s20, 6          ; ft*32*2
    s_mul_i32 s22, s3, {8*16*3584}
    s_add_u32 s21, s21, s22
    v_lshl_add_u32 v5, v3, 1, v5
    v_add_u32 v5, s21, v5
    v_lshlrev_b32 v6, 4, v1         ; lane*16
    s_mul_i32 s23, s20, {33*1024}
    s_add_u32 s23, s23, {W1F}
    s_lshl_b32 s24, s3, 13          ; w*8*1024
    s_add_u32 s24, s24, s23
    v_mov_b32 v7, 0x3f803f80
    v_mov_b32 v8, 0
    s_waitcnt lgkmcnt(0)
    """)
    a.srd(8, 4, WS_BYTES)
    a.srd(12, 6, 512 * 1792 * 2)
    for ks in range(8):
        for e in range(8):
            a(f"""
            s_mov_b32 s26, {(16*ks+e)*3584}
            buffer_load_ushort v{16+8*ks+e}, v5, s[12:15], s26 offen
            """)
    for ks in range(8):
        a(f"s_waitcnt vmcnt({min(63, 56 - 8 * ks + ks)})")
        for j in range(4):
            a(f"v_lshl_or_b32 v{88+4*ks+j}, v{16+8*ks+2*j+1}, 16, v{16+8*ks+2*j}")
        a(f"s_add_u32 s25, s24, {(ks//4)*4096}")
        a(f"buffer_store_dwordx4 v[{88+4*ks}:{88+4*ks+3}], v6, s[8:11], s25 offen offset:{(ks%4)*1024}")
        for j in range(4):
            a(f"v_dot2_f32_bf16 v8, v{88+4*ks+j}, v7, v8")
    a(f"""
    s_nop 3
    v_lshlrev_b32 v9, 2, v0
    ds_write_b32 v9, v8
    s_waitcnt lgkmcnt(0)
    s_barrier
    s_cmp_lg_u32 s3, 0
    s_cbranch_scc1 Lprep_fin
    v_lshlrev_b32 v9, 2, v3
    """)
    for j in range(8):
        a(f"ds_read_b32 v{16+j}, v9 offset:{128*j}")
    a(f"""
    s_waitcnt lgkmcnt(0)
    v_add_f32 v16, v16, v17
    v_add_f32 v18, v18, v19
    v_add_f32 v20, v20, v21
    v_add_f32 v22, v22, v23
    v_add_f32 v16, v16, v18
    v_add_f32 v20, v20, v22
    v_add_f32 v16, v16, v20          ; colsum
    v_cvt_pk_bf16_f32 v17, v16, v16
    v_and_b32 v18, 0xffff0000, v17
    v_sub_f32 v16, v16, v18
    v_cvt_pk_bf16_f32 v19, v16, v16
    v_and_b32 v20, 0xffff0000, v19   ; mid
    v_sub_f32 v16, v16, v20
    v_cvt_pk_bf16_f32 v21, v16, v16
    v_and_b32 v22, 0xffff0000, v21   ; lo
    v_and_b32 v17, 0xffff, v17
    v_and_b32 v19, 0xffff, v19
    v_and_b32 v21, 0xffff, v21
    v_or_b32 v24, v17, v20
    v_or_b32 v25, v21, v18
    v_or_b32 v26, v19, v22
    v_mov_b32 v27, 0
    v_cmp_gt_u32 vcc, 32, v1
    s_nop 1
    v_cndmask_b32 v24, 0, v24, vcc
    v_cndmask_b32 v25, 0, v25, vcc
    v_cndmask_b32 v26, 0, v26, vcc
    s_add_u32 s25, s23, {32*1024}
    buffer_store_dwordx4 v[24:27], v6, s[8:11], s25 offen
    s_branch Lprep_fin
    """)

    a(f"""
    Lprep_w2:
    s_cmp_ge_u32 s2, {WG_Z}
    s_cbranch_scc1 Lprep_z
    s_load_dwordx2 s[6:7], s[0:1], {KA_W2}
    s_sub_u32 s20, s2, {WG_W2}
    s_lshl_b32 s20, s20, 2
    s_add_u32 s20, s20, s3          ; wt 0..223
    s_mul_i32 s21, s20, 4682
    s_lshr_b32 s21, s21, 16
    s_mul_i32 s22, s21, 14
    s_sub_u32 s22, s20, s22         ; wt%14
    v_and_b32 v3, 31, v1            ; c
    v_lshrrev_b32 v4, 5, v1         ; g
    v_lshlrev_b32 v5, 12, v4        ; g*4096
    v_lshl_add_u32 v5, v3, 1, v5
    s_lshl_b32 s23, s21, 6
    s_lshl_b32 s24, s22, 17         ; ks0*16384 = (wt%14)*8*16384
    s_add_u32 s23, s23, s24
    v_add_u32 v5, s23, v5
    v_lshlrev_b32 v6, 4, v1
    s_lshl_b32 s24, s20, 13
    s_add_u32 s24, s24, {W2F}
    s_waitcnt lgkmcnt(0)
    """)
    a.srd(8, 4, WS_BYTES)
    a.srd(12, 6, 512 * 1792 * 2)
    for i in range(8):
        for e in range(8):
            if e % 4 == 0:
                a(f"s_mov_b32 s26, {(16*i+8*(e//4))*1024}")
            a(f"buffer_load_ushort v{16+8*i+e}, v5, s[12:15], s26 offen offset:{(e%4)*1024}")
    for i in range(8):
        a(f"s_waitcnt vmcnt({min(63, 56 - 8 * i + i)})")
        for j in range(4):
            a(f"v_lshl_or_b32 v{88+4*i+j}, v{16+8*i+2*j+1}, 16, v{16+8*i+2*j}")
        a(f"s_add_u32 s25, s24, {(i//4)*4096}")
        a(f"buffer_store_dwordx4 v[{88+4*i}:{88+4*i+3}], v6, s[8:11], s25 offen offset:{(i%4)*1024}")
    a("s_branch Lprep_fin")

    a(f"""
    Lprep_z:
    s_waitcnt lgkmcnt(0)
    """)
    a.srd(8, 4, WS_BYTES)
    a(f"""
    v_lshlrev_b32 v3, 4, v0
    v_mov_b32 v4, 0
    v_mov_b32 v5, 0
    v_mov_b32 v6, 0
    v_mov_b32 v7, 0
    """)
    for j in range(4):
        a(f"""
        s_mov_b32 s20, {STATS2 + 4096*j}
        buffer_store_dwordx4 v[4:7], v3, s[8:11], s20 offen
        """)
    a("Lprep_fin:")
    if stamps:
        stamp_end(a, idx, 8, vtmp=120, tid_saved=127)
    a("""
    Lprep_end:
    s_endpgm
    """)
    return kd("prep_kernel", 128)
```

```python
import sys, os
sys.path.insert(0, os.path.dirname(os.path.abspath(__file__)))
from common import *
import prep, conv
try:
    import gemm1, gemm2
    HAVE_GEMM = True
except ImportError:
    HAVE_GEMM = False

def build(out, stamps=False):
    ref = open("interleave_layers__ssm_conv_s4d__mixer_channel_mlp__prompt.s.ref").read()
    hdr = "".join(l + "\n" for l in ref.split("\n") if l.startswith(";") and "@launch" not in l and "Override" not in l and "grid=ceil" not in l)
    launches = [("prep_kernel", prep.N_PREP, 256, prep.PREP_LDS), ("conv1_kernel", 256, 256, conv.CONV_LDS)]
    if HAVE_GEMM:
        launches += [("gemm1a_kernel", gemm1.NWG, gemm1.BLOCK, gemm1.LDS), ("gemm2a_kernel", 256, 256, gemm2.LDS),
                     ("conv2_kernel", 256, 256, conv.CONV_LDS),
                     ("gemm1b_kernel", gemm1.NWG, gemm1.BLOCK, gemm1.LDS), ("gemm2b_kernel", 256, 256, gemm2.LDS)]
    for k, g, b, l in launches:
        hdr += f"; @launch kernel={k} grid=({g},1,1) block=({b},1,1) lds={l}\n"
    a = Asm()
    a.lines.append('.amdgcn_target "amdgcn-amd-amdhsa--gfx950"')
    a.lines.append(".text")
    kds = prep.gen_prep(a, stamps, 0)
    kds += conv.gen_conv(a, stamps, (1, 4))
    if HAVE_GEMM:
        kds += gemm1.gen(a, stamps, (2, 5))
        kds += gemm2.gen(a, stamps, (3, 6))
    a.lines.append("Ltext_end:")
    open(out, "w").write(hdr + a.text() + '.section .rodata,"a"\n' + kds)

if __name__ == "__main__":
    build("cur.s", False)
    build("cur_st.s", True)
```

```python
import struct

L_, D_, F_ = 2048, 512, 1792

X0T = 0x0000000
X1T = 0x0200000
X2T = 0x0400000
X3T = 0x0600000
HF1 = 0x0800000
HF2 = 0x1000000
W1F = 0x1800000
W2F = 0x1A00000
KBUF = 0x1C00000
KSTRIDE = 4352
STATS0 = 0x2000000
STATS2 = 0x2010000
CSUM = 0x2020000
STAMPS = 0x4000000
WS_BYTES = 0x10000000

KA_U, KA_LOGA, KA_AIM, KA_CR, KA_CI, KA_LOGDT, KA_DSKIP, KA_BX, KA_W1, KA_B1, KA_W2, KA_B2, KA_OUT, KA_DBG, KA_WS = [8 * i for i in range(15)]


def f32bits(x):
    return struct.unpack("<I", struct.pack("<f", x))[0]


def fhex(x):
    return "0x%08x" % f32bits(x)


class Asm:
    def __init__(self):
        self.lines = []

    def __call__(self, s):
        for ln in s.strip("\n").split("\n"):
            ln = ln.strip()
            if not ln:
                continue
            if ln.endswith(":"):
                self.lines.append(ln)
            else:
                self.lines.append("    " + ln)

    def text(self):
        return "\n".join(self.lines) + "\n"

    def head(self, name):
        self.lines.append(f".globl {name}")
        self.lines.append(".p2align 8")
        self.lines.append(f".type {name},@function")
        self.lines.append(f"{name}:")

    def srd(self, d, base, nbytes):
        self(f"""
        s_mov_b32 s{d}, s{base}
        s_mov_b32 s{d+1}, s{base+1}
        s_mov_b32 s{d+2}, {nbytes:#x}
        s_mov_b32 s{d+3}, 0x00020000
        """)


def kd(name, vgpr, sgpr=96, accum=None):
    if accum is None:
        accum = (vgpr + 3) // 4 * 4
    return f""".p2align 6
.amdhsa_kernel {name}
  .amdhsa_next_free_vgpr {vgpr}
  .amdhsa_next_free_sgpr {sgpr}
  .amdhsa_accum_offset {accum}
  .amdhsa_group_segment_fixed_size 0
  .amdhsa_kernarg_size 120
  .amdhsa_user_sgpr_count 2
  .amdhsa_user_sgpr_kernarg_segment_ptr 1
  .amdhsa_system_sgpr_workgroup_id_x 1
.end_amdhsa_kernel
"""


def vr(a, n=1):
    return f"v{a}" if n == 1 else f"v[{a}:{a+n-1}]"


def ar(a, n=1):
    return f"a{a}" if n == 1 else f"a[{a}:{a+n-1}]"


def stamp_start(a, sreg=90):
    a(f"s_memrealtime s[{sreg}:{sreg+1}]")


def stamp_end(a, idx, ws_srd, sreg=90, vtmp=0, tid_saved=None):
    t = vtmp
    a(f"""
    s_waitcnt vmcnt(0) lgkmcnt(0)
    s_memrealtime s[{sreg+2}:{sreg+3}]
    s_waitcnt lgkmcnt(0)
    s_mov_b64 exec, -1
    v_lshrrev_b32 v{t+2}, 6, v{tid_saved}
    v_and_b32 v{t+2}, 3, v{t+2}
    v_lshlrev_b32 v{t+2}, 4, v{t+2}
    v_and_b32 v{t+3}, 63, v{tid_saved}
    v_mov_b32 v{t}, s{sreg}
    v_mov_b32 v{t+1}, s{sreg+2}
    s_lshl_b32 s{sreg+4}, s2, 6
    s_add_u32 s{sreg+4}, s{sreg+4}, {STAMPS + idx * 0x10000:#x}
    v_cmp_eq_u32 vcc, 0, v{t+3}
    s_and_saveexec_b64 s[{sreg-2}:{sreg-1}], vcc
    buffer_store_dwordx2 v[{t}:{t+1}], v{t+2}, s[{ws_srd}:{ws_srd+3}], s{sreg+4} offen
    """)


MARKS = 0x5000000
class Marks:
    def __init__(self, a, on):
        self.a, self.on, self.n = a, on, 0
    def __call__(self):
        if self.on and self.n < 14:
            self.a(f"s_memrealtime s[{58+2*self.n}:{59+2*self.n}]")
            self.n += 1
    def dump(self, ws_srd, lane_v, wave_v, base_sreg=87):
        if not self.on:
            return
        a = self.a
        a(f"""
        s_waitcnt lgkmcnt(0)
        s_mov_b64 exec, 1
        v_lshlrev_b32 v2, 6, v{wave_v}
        s_sub_u32 s94, s{base_sreg}, {STAMPS:#x}
        s_lshl_b32 s94, s94, 2
        s_add_u32 s94, s94, {MARKS:#x}
        s_lshl_b32 s95, s2, 8
        s_add_u32 s94, s94, s95
        v_mov_b32 v0, s90
        buffer_store_dword v0, v2, s[{ws_srd}:{ws_srd+3}], s94 offen
        """)
        for i in range(self.n):
            a(f"""
            v_mov_b32 v3, s{58+2*i}
            buffer_store_dword v3, v2, s[{ws_srd}:{ws_srd+3}], s94 offen offset:{4+4*i}
            s_nop 1
            """)
        a("s_mov_b64 exec, -1")
```

```python
from common import *

CS = 4416
KC = 0
UB = 8 * CS
US = 4864
UPAD = 576
XB = UB + 2 * US
RB = XB + 8192
CONV_LDS = RB + 16384


def gen_conv(a, stamps=False, idx=(1, 4)):
    for li, (name, xin, st, xout) in enumerate([("conv1_kernel", X0T, STATS0, X1T), ("conv2_kernel", X2T, STATS2, X3T)]):
        a.head(name)
        if stamps:
            stamp_start(a)
            a(f"s_mov_b32 s87, {STAMPS + idx[li] * 0x10000:#x}")
        a(f"""
        s_mov_b32 s32, {xin:#x}
        s_mov_b32 s33, {st:#x}
        s_mov_b32 s34, {xout:#x}
        s_branch Lconv_body
        """)
    a(".p2align 8")
    a("Lconv_body:")
    a(f"""
    s_cmp_ge_u32 s2, 256
    s_cbranch_scc1 Lconv_end
    s_load_dwordx2 s[4:5], s[0:1], {KA_WS}
    s_load_dwordx2 s[6:7], s[0:1], {KA_DSKIP}
    v_mov_b32 v255, v0
    v_and_b32 v1, 63, v0            ; lane
    v_lshrrev_b32 v2, 6, v0         ; wave
    v_lshlrev_b32 v3, 4, v0         ; t*16
    v_readfirstlane_b32 s3, v2
    v_lshlrev_b32 v4, 6, v0         ; t*64
    s_lshl_b32 s12, s2, 13          ; cp*2*4096
    s_add_u32 s13, s12, s32
    s_add_u32 s14, s13, 4096
    s_lshl_b32 s15, s2, 2
    s_waitcnt lgkmcnt(0)
    s_load_dword s16, s[6:7], s15
    """)
    a.srd(8, 4, WS_BYTES)
    a(f"""
    buffer_load_dwordx4 v[16:19], v4, s[8:11], s33 offen
    buffer_load_dwordx4 v[20:23], v4, s[8:11], s33 offen offset:16
    buffer_load_dwordx4 v[24:27], v4, s[8:11], s33 offen offset:32
    buffer_load_dwordx4 v[28:31], v4, s[8:11], s33 offen offset:48
    buffer_load_dwordx4 v[8:11], v3, s[8:11], s13 offen
    buffer_load_dwordx4 v[12:15], v3, s[8:11], s14 offen
    """)
    a(f"""
    s_lshr_b32 s17, s3, 1
    s_and_b32 s18, s3, 1            ; hw
    s_lshl_b32 s19, s2, 1
    s_add_u32 s19, s19, s17
    s_mul_i32 s20, s19, {KSTRIDE}
    s_add_u32 s20, s20, {KBUF + 16}
    s_lshl_b32 s21, s18, 2
    s_sub_u32 s20, s20, s21
    s_mul_i32 s22, s3, {2*CS}
    v_lshlrev_b32 v5, 4, v1         ; lane*16
    """)
    for c in range(2):
        if c == 1:
            a(f"""
            s_sub_u32 s20, s20, 2
            s_add_u32 s22, s22, {CS}
            """)
        a(f"""
        s_mov_b32 m0, s22
        s_nop 0
        buffer_load_dwordx4 v5, s[8:11], s20 offen lds
        buffer_load_dwordx4 v5, s[8:11], s20 offen offset:1024 lds
        buffer_load_dwordx4 v5, s[8:11], s20 offen offset:2048 lds
        buffer_load_dwordx4 v5, s[8:11], s20 offen offset:3072 lds
        s_add_u32 s23, s22, 4096
        s_add_u32 s24, s20, 4096
        s_mov_b32 m0, s23
        s_mov_b64 exec, 0x3ff
        buffer_load_dwordx4 v5, s[8:11], s24 offen lds
        s_mov_b64 exec, -1
        """)
    a(f"""
    s_and_b32 s40, s2, 1
    s_mul_i32 s40, s40, {28*32*1024}
    s_lshr_b32 s41, s2, 3
    s_mul_i32 s41, s41, {28*1024}
    s_add_u32 s40, s40, s41
    s_mul_i32 s41, s3, {7*1024}
    s_add_u32 s40, s40, s41
    s_add_u32 s40, s40, {W1F}
    s_add_u32 s41, s40, 4096
    """)
    PFQ = [f"buffer_load_dwordx4 v[{8+4*(i%4)}:{11+4*(i%4)}], v5, s[8:11], s{40 + i//4} offen offset:{1024*(i%4)}" for i in range(7)]
    a(f"""
    v_mov_b32 v32, 0
    v_mov_b32 v33, 0
    v_mov_b32 v34, 0
    v_mov_b32 v35, 0
    v_cmp_gt_u32 vcc, 36, v0
    s_and_saveexec_b64 s[26:27], vcc
    ds_write_b128 v3, v[32:35] offset:{UB}
    ds_write_b128 v3, v[32:35] offset:{UB+US}
    v_cmp_gt_u32 vcc, 2, v0
    s_and_b64 exec, exec, vcc
    ds_write_b128 v3, v[32:35] offset:{UB+UPAD+4096}
    ds_write_b128 v3, v[32:35] offset:{UB+US+UPAD+4096}
    s_mov_b64 exec, -1
    """)
    a(f"""
    v_and_b32 v36, 15, v1
    v_lshrrev_b32 v37, 4, v1
    s_mul_i32 s25, s17, {US}
    s_add_u32 s25, s25, {UB + 64}
    s_lshl_b32 s26, s18, 6
    s_sub_u32 s25, s25, s26
    v_lshlrev_b32 v38, 5, v36
    v_lshl_add_u32 v38, v37, 4, v38
    v_add_u32 v38, s25, v38
    v_and_b32 v40, 3, v36
    v_lshrrev_b32 v41, 2, v36
    v_mul_u32_u24 v39, {CS}, v40
    v_lshl_add_u32 v39, v37, 4, v39
    v_lshlrev_b32 v41, 3, v41
    v_sub_u32 v39, v39, v41
    s_mul_i32 s25, s17, {4*CS}
    s_add_u32 s25, s25, 96
    s_sub_u32 s25, s25, s26
    v_add_u32 v39, s25, v39
    v_lshlrev_b32 v42, 5, v36
    v_lshl_add_u32 v42, v37, 3, v42
    """)
    a(f"""
    s_mov_b32 s28, {fhex(1.0/512)}
    s_mov_b32 s29, {fhex(1e-5)}
    s_waitcnt vmcnt(12)
    """)
    for p in range(4):
        s1a, s2a, s1b, s2b = 16 + 4 * p, 17 + 4 * p, 18 + 4 * p, 19 + 4 * p
        ma, mb = 44 + 2 * p, 45 + 2 * p
        ra, rb = 52 + 2 * p, 53 + 2 * p
        a(f"""
        v_mul_f32 v{s1a}, s28, v{s1a}
        v_mul_f32 v{s1b}, s28, v{s1b}
        v_mul_f32 v{s2a}, s28, v{s2a}
        v_mul_f32 v{s2b}, s28, v{s2b}
        v_fma_f32 v{s2a}, -v{s1a}, v{s1a}, v{s2a}
        v_fma_f32 v{s2b}, -v{s1b}, v{s1b}, v{s2b}
        v_cvt_pk_bf16_f32 v60, v{s1a}, v{s1b}
        v_max_f32 v{s2a}, 0, v{s2a}
        v_max_f32 v{s2b}, 0, v{s2b}
        v_lshlrev_b32 v{ma}, 16, v60
        v_and_b32 v{mb}, 0xffff0000, v60
        v_cvt_pk_bf16_f32 v61, v{s2a}, v{s2b}
        v_lshlrev_b32 v62, 16, v61
        v_and_b32 v63, 0xffff0000, v61
        v_add_f32 v62, s29, v62
        v_add_f32 v63, s29, v63
        v_cvt_pk_bf16_f32 v61, v62, v63
        v_lshlrev_b32 v62, 16, v61
        v_and_b32 v63, 0xffff0000, v61
        v_sqrt_f32 v62, v62
        v_sqrt_f32 v63, v63
        s_nop 0
        v_cvt_pk_bf16_f32 v61, v62, v63
        v_lshlrev_b32 v62, 16, v61
        v_and_b32 v63, 0xffff0000, v61
        v_rcp_f32 v{ra}, v62
        v_rcp_f32 v{rb}, v63
        """)
    a("s_waitcnt vmcnt(10)")
    for ch in range(2):
        for p in range(4):
            x = 8 + 4 * ch + p
            u = 64 + 4 * ch + p
            ma, mb = 44 + 2 * p, 45 + 2 * p
            ra, rb = 52 + 2 * p, 53 + 2 * p
            a(f"""
            v_lshlrev_b32 v60, 16, v{x}
            v_and_b32 v61, 0xffff0000, v{x}
            v_sub_f32 v60, v60, v{ma}
            v_sub_f32 v61, v61, v{mb}
            v_cvt_pk_bf16_f32 v62, v60, v61
            v_lshlrev_b32 v60, 16, v62
            v_and_b32 v61, 0xffff0000, v62
            v_mul_f32 v60, v60, v{ra}
            v_mul_f32 v61, v61, v{rb}
            v_cvt_pk_bf16_f32 v{u}, v60, v61
            """)
    a(f"""
    ds_write_b128 v3, v[64:67] offset:{UB+UPAD}
    ds_write_b128 v3, v[68:71] offset:{UB+US+UPAD}
    ds_write_b128 v3, v[8:11] offset:{XB}
    ds_write_b128 v3, v[12:15] offset:{XB+4096}
    """)
    ACC = 72
    G0 = 104
    FB = 236
    NFB = 4
    for r in range(32):
        a(f"v_mov_b32 v{ACC+r}, 0")
    a("""
    s_waitcnt vmcnt(0) lgkmcnt(0)
    s_barrier
    """)
    for q in PFQ:
        a(q)
    ops = []

    def issue_G(j):
        a(f"ds_read_b128 v[{G0+4*j}:{G0+4*j+3}], v38 offset:{128*j}")
        ops.append(("G", j))

    def issue_F(t):
        b = FB + 4 * (t % NFB)
        a(f"ds_read_b64 v[{b}:{b+1}], v39 offset:{4096-128*t}")
        a(f"ds_read_b64 v[{b+2}:{b+3}], v39 offset:{4096-128*t+8}")
        ops.append(("F", t)); ops.append(("F", t))

    done_upto = [0]

    def wait_for(tags):
        last = max(i for i, o in enumerate(ops) if o in tags)
        if last < done_upto[0]:
            return
        n = len(ops) - 1 - last
        assert n <= 15
        a(f"s_waitcnt lgkmcnt({n})")
        done_upto[0] = last + 1

    pend = []
    gorder = [[4 + 4 * c for c in range(8)], [3 + 4 * c for c in range(8)], [2 + 4 * c for c in range(8)],
              [1 + 4 * c for c in range(8)], [0]]
    issue_F(0)
    for j in gorder[0]:
        issue_G(j)
    issue_F(1)
    nextF = 2
    for t in range(33):
        cmin = max(0, -(-(t - 4) // 4))
        todo = []
        if t + 1 < len(gorder):
            todo += [("G", j) for j in gorder[t + 1]]
        if nextF <= 32 and nextF <= t + 2:
            todo.append(("F", nextF)); nextF += 1
        b = FB + 4 * (t % NFB)
        cs = list(range(cmin, 8))
        for k, c in enumerate(cs):
            j = 4 - t + 4 * c
            wait_for({("F", t), ("G", j)})
            a(f"v_mfma_f32_16x16x32_bf16 v[{ACC+4*c}:{ACC+4*c+3}], v[{b}:{b+3}], v[{G0+4*j}:{G0+4*j+3}], v[{ACC+4*c}:{ACC+4*c+3}]")
            nper = -(-len(todo) // max(1, len(cs) - k))
            for _ in range(nper):
                if todo:
                    kind, x = todo.pop(0)
                    need = 2 if kind == "F" else 1
                    if len(ops) - done_upto[0] + need > 15:
                        n = 15 - need
                        a(f"s_waitcnt lgkmcnt({n})")
                        done_upto[0] = len(ops) - n
                    if kind == "F":
                        issue_F(x)
                    else:
                        issue_G(x)
        assert not todo
    a(f"""
    s_waitcnt lgkmcnt(0)
    s_lshl_b32 s25, s3, 12
    s_add_u32 s25, s25, {RB}
    v_add_u32 v43, s25, v5
    s_xor_b32 s26, s3, 1
    s_lshl_b32 s26, s26, 12
    s_add_u32 s26, s26, {RB}
    v_add_u32 v60, s26, v5
    s_mul_i32 s27, s17, {US}
    s_add_u32 s27, s27, {UB + UPAD}
    v_add_u32 v61, s27, v42
    s_lshl_b32 s27, s17, 12
    s_add_u32 s27, s27, {XB}
    v_add_u32 v62, s27, v42
    s_lshl_b32 s30, s16, 16
    s_and_b32 s31, s16, 0xffff0000
    s_cmp_eq_u32 s17, 0
    s_cselect_b32 s30, s30, s31
    s_lshl_b32 s31, s19, 12
    s_add_u32 s31, s31, s34
    s_cmp_eq_u32 s18, 0
    s_cbranch_scc0 Lconv_ep1
    """)
    for role in range(2):
        if role == 1:
            a("Lconv_ep1:")
        keep = [0, 1, 2, 3] if role == 0 else [4, 5, 6, 7]
        give = [4, 5, 6, 7] if role == 0 else [0, 1, 2, 3]
        for k, c in enumerate(give):
            a(f"ds_write_b128 v43, v[{ACC+4*c}:{ACC+4*c+3}] offset:{1024*k}")
        for k, c in enumerate(keep):
            a(f"ds_read_b64 v[{104+2*k}:{105+2*k}], v61 offset:{512*c}")
            a(f"ds_read_b64 v[{112+2*k}:{113+2*k}], v62 offset:{512*c}")
        a("""
        s_waitcnt lgkmcnt(0)
        s_barrier
        """)
        for k in range(4):
            a(f"ds_read_b128 v[{120+4*k}:{123+4*k}], v60 offset:{1024*k}")
        for k in range(4):
            for h in range(2):
                u = 104 + 2 * k + h
                t0, t1 = 136 + 4 * k + 2 * h, 137 + 4 * k + 2 * h
                a(f"""
                v_lshlrev_b32 v{t0}, 16, v{u}
                v_and_b32 v{t1}, 0xffff0000, v{u}
                v_mul_f32 v{t0}, s30, v{t0}
                v_mul_f32 v{t1}, s30, v{t1}
                v_cvt_pk_bf16_f32 v63, v{t0}, v{t1}
                v_lshlrev_b32 v{t0}, 16, v63
                v_and_b32 v{t1}, 0xffff0000, v63
                """)
        for k, c in enumerate(keep):
            a(f"s_waitcnt lgkmcnt({3-k})")
            for h in range(2):
                y0, y1 = ACC + 4 * c + 2 * h, ACC + 4 * c + 2 * h + 1
                p0, p1 = 120 + 4 * k + 2 * h, 121 + 4 * k + 2 * h
                t0, t1 = 136 + 4 * k + 2 * h, 137 + 4 * k + 2 * h
                x = 112 + 2 * k + h
                o = 152 + 2 * k + h
                a(f"""
                v_add_f32 v{y0}, v{y0}, v{p0}
                v_add_f32 v{y1}, v{y1}, v{p1}
                v_cvt_pk_bf16_f32 v63, v{y0}, v{y1}
                v_lshlrev_b32 v{y0}, 16, v63
                v_and_b32 v{y1}, 0xffff0000, v63
                v_add_f32 v{y0}, v{y0}, v{t0}
                v_add_f32 v{y1}, v{y1}, v{t1}
                v_cvt_pk_bf16_f32 v63, v{y0}, v{y1}
                v_lshlrev_b32 v{y0}, 16, v63
                v_and_b32 v{y1}, 0xffff0000, v63
                v_lshlrev_b32 v{t0}, 16, v{x}
                v_and_b32 v{t1}, 0xffff0000, v{x}
                v_add_f32 v{y0}, v{y0}, v{t0}
                v_add_f32 v{y1}, v{y1}, v{t1}
                v_cvt_pk_bf16_f32 v{o}, v{y0}, v{y1}
                """)
            a(f"buffer_store_dwordx2 v[{152+2*k}:{153+2*k}], v42, s[8:11], s31 offen offset:{512*c}")
        if role == 0:
            a("s_branch Lconv_fin")
    a("Lconv_fin:")
    if stamps:
        a(f"""
        s_waitcnt vmcnt(0) lgkmcnt(0)
        s_memrealtime s[92:93]
        s_waitcnt lgkmcnt(0)
        v_lshrrev_b32 v2, 6, v255
        v_lshlrev_b32 v2, 4, v2
        v_and_b32 v3, 63, v255
        v_mov_b32 v0, s90
        v_mov_b32 v1, s92
        s_lshl_b32 s94, s2, 6
        s_add_u32 s94, s94, s87
        v_cmp_eq_u32 vcc, 0, v3
        s_and_saveexec_b64 s[88:89], vcc
        buffer_store_dwordx2 v[0:1], v2, s[8:11], s94 offen
        """)
    a("""
    Lconv_end:
    s_endpgm
    """)
    return kd("conv1_kernel", 256) + kd("conv2_kernel", 256)
```

```python
from common import *
import math

NMAIN = 224
NWG = 256
WLA = 8
DLA = 6
BLOCK = 512
SB = 131072
LDS = SB + 8192

C1 = -2.0 * math.sqrt(2.0 / math.pi) * 1.4426950408889634
C2 = C1 * 0.044715


def finalize2(a, j0, T, vaddr, R):
    for p in range(8):
        a(f"ds_read_b64 v[{T+2*p}:{T+2*p+1}], v{vaddr} offset:{2048*j0 + 256*p}")
    a("s_waitcnt lgkmcnt(0)")
    a(f"""
    v_add_f32 v{T}, v{T}, v{T+2}
    v_add_f32 v{T+1}, v{T+1}, v{T+3}
    v_add_f32 v{T+4}, v{T+4}, v{T+6}
    v_add_f32 v{T+5}, v{T+5}, v{T+7}
    v_add_f32 v{T+8}, v{T+8}, v{T+10}
    v_add_f32 v{T+9}, v{T+9}, v{T+11}
    v_add_f32 v{T+12}, v{T+12}, v{T+14}
    v_add_f32 v{T+13}, v{T+13}, v{T+15}
    v_add_f32 v{T}, v{T}, v{T+4}
    v_add_f32 v{T+1}, v{T+1}, v{T+5}
    v_add_f32 v{T+8}, v{T+8}, v{T+12}
    v_add_f32 v{T+9}, v{T+9}, v{T+13}
    v_add_f32 v{T}, v{T}, v{T+8}
    v_add_f32 v{T+1}, v{T+1}, v{T+9}
    v_mul_f32 v{T}, s28, v{T}                 ; mean
    v_mul_f32 v{T+1}, s28, v{T+1}
    v_fma_f32 v{T+1}, -v{T}, v{T}, v{T+1}
    v_max_f32 v{T+1}, 0, v{T+1}               ; var
    v_cvt_pk_bf16_f32 v{T+4}, v{T+1}, v{T+1}
    v_and_b32 v{T+4}, 0xffff0000, v{T+4}      ; v1
    v_add_f32 v{T+4}, s29, v{T+4}
    v_cvt_pk_bf16_f32 v{T+4}, v{T+4}, v{T+4}
    v_and_b32 v{T+4}, 0xffff0000, v{T+4}
    v_sqrt_f32 v{T+4}, v{T+4}
    s_nop 0
    v_cvt_pk_bf16_f32 v{T+4}, v{T+4}, v{T+4}
    v_and_b32 v{T+4}, 0xffff0000, v{T+4}      ; s1
    v_rcp_f32 v{T+7}, v{T+4}
    s_nop 0
    v_mul_f32 v{T+8}, v{T+1}, v{T+7}
    v_mul_f32 v{T+8}, v{T+8}, v{T+7}          ; var/s1^2
    v_cvt_pk_bf16_f32 v{T+8}, v{T+8}, v{T+8}
    v_and_b32 v{T+8}, 0xffff0000, v{T+8}
    v_add_f32 v{T+8}, s29, v{T+8}
    v_cvt_pk_bf16_f32 v{T+8}, v{T+8}, v{T+8}
    v_and_b32 v{T+8}, 0xffff0000, v{T+8}
    v_sqrt_f32 v{T+8}, v{T+8}
    s_nop 0
    v_cvt_pk_bf16_f32 v{T+8}, v{T+8}, v{T+8}
    v_and_b32 v{T+8}, 0xffff0000, v{T+8}      ; s2
    v_rcp_f32 v{T+8}, v{T+8}
    s_nop 0
    v_mul_f32 v{R}, v{T+7}, v{T+8}            ; r
    v_mul_f32 v{R+1}, v{R}, v{T}              ; r*mean
    v_mov_b32 v{R+2}, v{R}
    v_mov_b32 v{R+3}, v{R+1}
    s_nop 1
    v_permlane32_swap_b32 v{R}, v{R+2}
    v_permlane32_swap_b32 v{R+1}, v{R+3}
    """)


def gelu_tile_pk(a, A, R, B1, CS, T, O, SC):
    for i in range(0, 16, 4):
        xs = [A + i, A + i + 2]
        ts = [T, T + 2]
        us = [T + 4, T + 6]
        for k in range(2):
            a(f"v_pk_fma_f32 v[{us[k]}:{us[k]+1}], v[{R}:{R+1}], v[{CS+i+2*k}:{CS+i+2*k+1}], v[{B1+i+2*k}:{B1+i+2*k+1}] op_sel:[1,0,0] op_sel_hi:[1,1,1] neg_lo:[1,0,0] neg_hi:[1,0,0]")
        for k in range(2):
            a(f"v_pk_fma_f32 v[{xs[k]}:{xs[k]+1}], v[{xs[k]}:{xs[k]+1}], v[{R}:{R+1}], v[{us[k]}:{us[k]+1}] op_sel:[0,0,0] op_sel_hi:[1,0,1]")
        for k in range(2):
            a(f"v_pk_mul_f32 v[{ts[k]}:{ts[k]+1}], v[{xs[k]}:{xs[k]+1}], v[{xs[k]}:{xs[k]+1}]")
        for k in range(2):
            a(f"v_pk_fma_f32 v[{ts[k]}:{ts[k]+1}], v[{ts[k]}:{ts[k]+1}], s[{SC}:{SC+1}], v[26:27]")
        for k in range(2):
            a(f"v_pk_mul_f32 v[{ts[k]}:{ts[k]+1}], v[{ts[k]}:{ts[k]+1}], v[{xs[k]}:{xs[k]+1}]")
        for k in range(4):
            a(f"v_exp_f32 v{T+k}, v{T+k}")
        a("s_nop 0")
        for k in range(2):
            a(f"v_pk_add_f32 v[{ts[k]}:{ts[k]+1}], v[{ts[k]}:{ts[k]+1}], 1.0 op_sel_hi:[1,0]")
        for k in range(4):
            a(f"v_rcp_f32 v{T+k}, v{T+k}")
        a("s_nop 0")
        for k in range(2):
            a(f"v_pk_mul_f32 v[{xs[k]}:{xs[k]+1}], v[{xs[k]}:{xs[k]+1}], v[{ts[k]}:{ts[k]+1}]")
        a(f"v_cvt_pk_bf16_f32 v{O+i//2}, v{A+i}, v{A+i+1}")
        a(f"v_cvt_pk_bf16_f32 v{O+i//2+1}, v{A+i+2}, v{A+i+3}")


def gelu_tile(a, A, r, rm, B1, CS, T, O, vc1):
    for i in range(0, 16, 4):
        x = [A + i + k for k in range(4)]
        t = [T + k for k in range(4)]
        u = [T + 4 + k for k in range(4)]
        for k in range(4):
            a(f"v_fma_f32 v{u[k]}, -v{rm}, v{CS+i+k}, v{B1+i+k}")
        for k in range(4):
            a(f"v_fma_f32 v{x[k]}, v{x[k]}, v{r}, v{u[k]}")
        for k in range(4):
            a(f"v_mul_f32 v{t[k]}, v{x[k]}, v{x[k]}")
        for k in range(4):
            a(f"v_fma_f32 v{t[k]}, v{t[k]}, s31, v{vc1}")
        for k in range(4):
            a(f"v_mul_f32 v{t[k]}, v{t[k]}, v{x[k]}")
        for k in range(4):
            a(f"v_exp_f32 v{t[k]}, v{t[k]}")
        for k in range(4):
            a(f"v_add_f32 v{t[k]}, 1.0, v{t[k]}")
        for k in range(4):
            a(f"v_rcp_f32 v{t[k]}, v{t[k]}")
        for k in range(4):
            a(f"v_mul_f32 v{x[k]}, v{x[k]}, v{t[k]}")
        a(f"v_cvt_pk_bf16_f32 v{O+i//2}, v{x[0]}, v{x[1]}")
        a(f"v_cvt_pk_bf16_f32 v{O+i//2+1}, v{x[2]}, v{x[3]}")


def load_b1cs(a, RAW, CS):
    for q in range(4):
        a(f"buffer_load_dwordx2 v[{RAW+2*q}:{RAW+2*q+1}], v6, s[20:23], s26 offen offset:{16*q}")
    for q in range(4):
        a(f"buffer_load_dwordx4 v[{CS+4*q}:{CS+4*q+3}], v7, s[8:11], s27 offen offset:{32*q}")


def unpack_b1(a, RAW, B1):
    for q in range(4):
        for h in range(2):
            a(f"""
            v_lshlrev_b32 v{B1+4*q+2*h}, 16, v{RAW+2*q+h}
            v_and_b32 v{B1+4*q+2*h+1}, 0xffff0000, v{RAW+2*q+h}
            """)


def store_tile(a, j, O):
    a(f"""
    s_add_u32 s35, s34, {j*112*1024}
    buffer_store_dwordx4 v[{O}:{O+3}], v3, s[8:11], s35 offen
    buffer_store_dwordx4 v[{O+4}:{O+7}], v3, s[8:11], s35 offen offset:1024
    """)


def gen(a, stamps=False, idx=(2, 5)):
    for li, (name, xin, hout) in enumerate([("gemm1a_kernel", X1T, HF1), ("gemm1b_kernel", X3T, HF2)]):
        a.head(name)
        if stamps:
            stamp_start(a)
            a(f"s_mov_b32 s87, {STAMPS + idx[li] * 0x10000:#x}")
        a(f"""
        s_mov_b32 s32, {xin:#x}
        s_mov_b32 s33, {hout:#x}
        s_branch Lg1_body
        """)
    a(".p2align 8")
    a("Lg1_body:")
    a(f"""
    s_cmp_ge_u32 s2, {NWG}
    s_cbranch_scc1 Lg1_end
    s_load_dwordx2 s[4:5], s[0:1], {KA_WS}
    s_load_dwordx2 s[6:7], s[0:1], {KA_B1}
    v_and_b32 v1, 63, v0            ; lane
    v_lshrrev_b32 v2, 6, v0         ; wave
    v_lshlrev_b32 v3, 4, v1         ; lane*16
    v_readfirstlane_b32 s36, v2
    s_cmp_ge_u32 s2, {NMAIN}
    s_cbranch_scc1 Lg1_pref
    s_and_b32 s12, s2, 7
    s_lshr_b32 s13, s2, 3
    s_lshr_b32 s14, s12, 1
    s_lshl_b32 s14, s14, 2
    s_and_b32 s15, s13, 3
    s_add_u32 s14, s14, s15         ; tg
    s_and_b32 s15, s12, 1
    s_mul_i32 s15, s15, 7
    s_lshr_b32 s16, s13, 2
    s_add_u32 s15, s15, s16         ; fg
    s_mov_b32 s39, s16
    s_and_b32 s3, s36, 3
    s_lshl_b32 s16, s15, 2
    s_add_u32 s16, s16, s3          ; ft
    v_lshrrev_b32 v5, 5, v1         ; h / g
    v_lshlrev_b32 v6, 3, v5         ; h*8
    v_lshlrev_b32 v7, 4, v5         ; h*16
    s_lshl_b32 s26, s16, 6
    s_lshl_b32 s27, s16, 7
    s_add_u32 s27, s27, {CSUM}
    v_bfe_u32 v10, v1, 4, 1         ; th
    s_lshl_b32 s37, s3, 12
    v_add_u32 v24, s37, v3
    v_and_b32 v25, 31, v1
    v_lshlrev_b32 v25, 3, v25
    v_lshl_add_u32 v25, v5, 11, v25
    v_add_u32 v25, {SB}, v25
    s_mul_i32 s34, s14, {4*112*1024}
    s_lshl_b32 s35, s16, 11
    s_add_u32 s34, s34, s35
    s_add_u32 s34, s34, s33
    s_mov_b32 s28, {fhex(1.0/512)}
    s_mov_b32 s29, {fhex(1e-5)}
    s_mov_b32 s30, {fhex(C2)}
    s_mov_b32 s31, {fhex(C2)}
    v_mov_b32 v26, {fhex(C1)}
    v_mov_b32 v27, {fhex(C1)}
    s_waitcnt lgkmcnt(0)
    """)
    a.srd(8, 4, WS_BYTES)
    a.srd(20, 6, 1792 * 2)
    a("""
    s_cmp_ge_u32 s36, 4
    s_cbranch_scc1 Lg1_helper
    """)
    mk = Marks(a, stamps)
    ACC = 64
    XB = 40
    NXB = 6
    TB = 12
    ST = 32
    a(f"""
    s_lshl_b32 s17, s16, 15
    s_add_u32 s17, s17, {W1F}
    """)
    for p in range(4):
        a(f"""
        s_add_u32 s44, s3, {p}
        s_and_b32 s44, s44, 3
        s_lshl_b32 s{48+p}, s44, 11
        s_lshl_b32 s44, s44, 10
        s_add_u32 s{40+p}, s17, s44
        """)
    nW = [0]

    def wload():
        n = nW[0]
        c, p = n // 4, n % 4
        if p == 0:
            a(f"""
            s_add_u32 s45, s39, {c}
            s_and_b32 s45, s45, 7
            s_lshl_b32 s45, s45, 12
            """)
        a(f"s_add_u32 s25, s{40+p}, s45")
        a(f"buffer_load_dwordx4 a[{4*n}:{4*n+3}], v3, s[8:11], s25 offen")
        nW[0] += 1

    for _ in range(WLA):
        wload()
    a(f"""
    v_bfe_u32 v8, v1, 2, 2          ; r
    v_and_b32 v9, 3, v1             ; c
    v_lshlrev_b32 v11, 10, v5       ; g*1024
    v_lshl_add_u32 v11, v8, 7, v11  ; + r*128
    v_lshl_add_u32 v11, v10, 5, v11 ; + 32 th
    v_lshl_add_u32 v11, v9, 3, v11  ; + 8c
    v_lshrrev_b32 v8, 1, v8         ; r>>1
    v_lshl_add_u32 v20, v8, 6, v11
    v_xor_b32 v8, 1, v8
    v_lshl_add_u32 v21, v8, 6, v11
    v_mov_b32 v29, 0x3f803f80
    v_lshlrev_b32 v30, 3, v1
    s_lshl_b32 s38, s3, 9
    s_add_u32 s38, s38, {SB}
    v_add_u32 v30, s38, v30
    """)
    for p in range(4):
        a(f"""
        v_add_u32 v{TB+2*p}, s{48+p}, v20
        v_add_u32 v{TB+2*p+1}, s{48+p}, v21
        """)
    for r in range(64):
        a(f"v_mov_b32 v{ACC+r}, 0")
    for r in range(8):
        a(f"v_mov_b32 v{ST+r}, 0")
    mk()

    lds = []
    done = [0]

    def rd(it):
        i, n, j = it
        c, p = n // 4, n % 4
        b = XB + 4 * (i % NXB)
        a(f"ds_read_b64_tr_b16 v[{b}:{b+1}], v{TB+2*p+(j&1)} offset:{c*8192}")
        a(f"ds_read_b64_tr_b16 v[{b+2}:{b+3}], v{TB+2*p+(j&1)} offset:{c*8192+512}")
        lds.append(("X", i)); lds.append(("X", i))

    def wait(tag):
        last = max(i for i, t in enumerate(lds) if t == tag)
        if last < done[0]:
            return
        n = len(lds) - 1 - last
        assert n <= 15, n
        a(f"s_waitcnt lgkmcnt({n})")
        done[0] = last + 1

    def mfma(it):
        i, n, j = it
        b = XB + 4 * (i % NXB)
        wait(("X", i))
        a(f"v_mfma_f32_32x32x16_bf16 v[{ACC+16*j}:{ACC+16*j+15}], a[{4*n}:{4*n+3}], v[{b}:{b+3}], v[{ACC+16*j}:{ACC+16*j+15}]")
        if n % 4 == 0 and j % 2 == 1:
            b0 = XB + 4 * ((i - 1) % NXB)
            for r in range(4):
                a(f"""
                v_dot2_f32_bf16 v{ST+2*j-2}, v{b0+r}, v29, v{ST+2*j-2}
                v_dot2_f32_bf16 v{ST+2*j-1}, v{b0+r}, v{b0+r}, v{ST+2*j-1}
                v_dot2_f32_bf16 v{ST+2*j}, v{b+r}, v29, v{ST+2*j}
                v_dot2_f32_bf16 v{ST+2*j+1}, v{b+r}, v{b+r}, v{ST+2*j+1}
                """)

    PF = 4
    cnt = [0]

    def run_items(pairs, extra=None):
        items = []
        for n, j in pairs:
            items.append((cnt[0], n, j)); cnt[0] += 1
        for it in items[:PF]:
            rd(it)
        for k, it in enumerate(items):
            mfma(it)
            if k + PF < len(items):
                rd(items[k + PF])
            if extra:
                extra(k)

    for c in range(8):
        a("s_barrier")
        a(f"s_waitcnt vmcnt({nW[0] - (4*c+4)})")
        if c in (0, 4, 7):
            mk()

        def ex(k):
            if k % 2 == 1 and nW[0] < 32:
                wload()
        run_items([(n, j) for n in range(4 * c, 4 * c + 4) for j in range(2)], ex)
    for p in range(8):
        a(f"v_add_u32 v{TB+p}, 0x10000, v{TB+p}")
    a("s_barrier          ; X1")
    mk()

    dump = [("S", 0), ("S", 1)] + [(j, r) for j in range(2) for r in range(4)]

    def exB(k):
        if k >= 1 and dump:
            j, r = dump.pop(0)
            if j == "S":
                a(f"ds_write_b64 v30, v[{ST+2*r}:{ST+2*r+1}] offset:{2048*r}")
            else:
                a(f"ds_write_b128 v24, v[{ACC+16*j+4*r}:{ACC+16*j+4*r+3}] offset:{16384*j+1024*r}")
            lds.append(("W", j, r))
            if not dump:
                a("s_waitcnt lgkmcnt(0)")
                done[0] = len(lds)
                a("s_barrier          ; X2")
                mk()
                load_b1cs(a, ACC + 8, ACC + 16)
    run_items([(n, j) for n in range(0, 32) for j in (2, 3)], exB)
    mk()
    a("s_waitcnt vmcnt(0)")
    unpack_b1(a, ACC + 8, XB)
    for j in (2, 3):
        a(f"ds_write_b64 v30, v[{ST+2*j}:{ST+2*j+1}] offset:{2048*j}")
    for r in range(4):
        a(f"ds_write_b128 v24, v[{ACC+32+4*r}:{ACC+32+4*r+3}] offset:{32768+1024*r}")
    a("""
    s_waitcnt lgkmcnt(0)
    s_barrier          ; Z1
    """)
    mk()
    finalize2(a, 2, ACC + 32, 25, 12)
    gelu_tile_pk(a, ACC + 48, 14, XB, ACC + 16, 56, 32, 30)
    store_tile(a, 3, 32)
    mk()
    if stamps:
        a("v_mov_b32 v5, s36")
        mk.dump(8, None, 5)
    a("s_branch Lg1_fin")

    a("Lg1_helper:")
    B1, CS, RAW = 64, 80, 96
    AB = 104
    AB2 = 40
    a(f"""
    v_lshrrev_b32 v4, 3, v1
    v_and_b32 v8, 7, v1
    v_lshlrev_b32 v10, 2, v10
    v_xor_b32 v8, v8, v10
    v_lshlrev_b32 v4, 12, v4
    v_lshl_add_u32 v4, v8, 4, v4    ; vD
    s_lshl_b32 s18, s14, 8
    s_add_u32 s18, s18, s32
    s_lshl_b32 s19, s3, 15          ; w*32768 (octet w)
    s_add_u32 s18, s18, s19
    s_lshl_b32 s19, s3, 10
    """)
    vm = []
    dq = [(j, 0) for j in range(16)] + [(j, 1) for j in range(16)]

    def dma():
        j, hh = dq.pop(0)
        if j % 2 == 0:
            a(f"""
            s_add_u32 s45, s39, {j//2}
            s_and_b32 s45, s45, 7
            s_lshl_b32 s45, s45, 18
            s_add_u32 s45, s45, s18
            """)
        a(f"""
        s_add_u32 m0, s19, {hh*65536 + j*4096}
        s_add_u32 s24, s45, {(j%2)*131072 + hh*128}
        buffer_load_dwordx4 v4, s[8:11], s24 offen lds
        """)
        vm.append(("D", j, hh))

    def wait_vm(tag):
        last = vm.index(tag)
        a(f"s_waitcnt vmcnt({len(vm) - 1 - last})")

    for _ in range(DLA):
        dma()
    for c in range(8):
        wait_vm(("D", 2 * c + 1, 0))
        a("s_barrier")
        for _ in range(2 if c < 5 else 4):
            if dq:
                dma()
        if c == 7:
            load_b1cs(a, RAW, CS)
            vm.extend([("B",)] * 8)
    while dq:
        dma()
    wait_vm(("D", 5, 1))
    a("s_barrier          ; X1")
    a("s_waitcnt vmcnt(0)")
    unpack_b1(a, RAW, B1)
    a("s_barrier          ; X2")
    for r in range(4):
        a(f"ds_read_b128 v[{AB2+4*r}:{AB2+4*r+3}], v24 offset:{1024*r}")
    finalize2(a, 0, AB, 25, 12)
    for r in range(4):
        a(f"ds_read_b128 v[{AB+4*r}:{AB+4*r+3}], v24 offset:{16384+1024*r}")
    gelu_tile(a, AB2, 12, 13, B1, CS, 32, 120, 26)
    store_tile(a, 0, 120)
    a("s_waitcnt lgkmcnt(0)")
    gelu_tile(a, AB, 14, 15, B1, CS, 32, 96, 26)
    store_tile(a, 1, 96)
    a("s_barrier          ; Z1")
    for r in range(4):
        a(f"ds_read_b128 v[{AB2+4*r}:{AB2+4*r+3}], v24 offset:{32768+1024*r}")
    finalize2(a, 2, AB, 25, 12)
    gelu_tile_pk(a, AB2, 12, B1, CS, 32, 120, 30)
    store_tile(a, 2, 120)
    a("s_branch Lg1_fin")

    a(f"""
    Lg1_pref:
    s_waitcnt lgkmcnt(0)
    """)
    a.srd(8, 4, WS_BYTES)
    a(f"""
    s_sub_u32 s12, s2, {NMAIN}
    s_lshr_b32 s12, s12, 3          ; quarter 0..3
    s_mul_i32 s12, s12, {448*1024}
    s_mul_i32 s13, s36, {56*1024}
    s_add_u32 s12, s12, s13
    s_add_u32 s12, s12, {W2F}
    s_mov_b32 s3, 0
    s_mov_b32 s13, 0
    Lg1_pf_loop:
    """)
    for i in range(4):
        a(f"buffer_load_dwordx4 v[{8+4*i}:{11+4*i}], v3, s[8:11], s12 offen offset:{1024*i}")
    a(f"""
    s_add_u32 s12, s12, 4096
    s_add_u32 s13, s13, 1
    s_cmp_lt_u32 s13, 14
    s_cbranch_scc1 Lg1_pf_loop
    s_waitcnt vmcnt(0)
    """)

    a("Lg1_fin:")
    if stamps:
        a(f"""
        s_waitcnt vmcnt(0) lgkmcnt(0)
        s_memrealtime s[92:93]
        s_waitcnt lgkmcnt(0)
        s_lshl_b32 s95, s3, 4
        v_mov_b32 v2, s95
        v_mov_b32 v3, v1
        v_mov_b32 v0, s90
        v_mov_b32 v1, s92
        s_lshl_b32 s94, s2, 6
        s_add_u32 s94, s94, s87
        v_cmp_eq_u32 vcc, 0, v3
        s_and_saveexec_b64 s[88:89], vcc
        buffer_store_dwordx2 v[0:1], v2, s[8:11], s94 offen
        """)
    a("""
    Lg1_end:
    s_endpgm
    """)
    return kd("gemm1a_kernel", 256, accum=128) + kd("gemm1b_kernel", 256, accum=128)
```

```python
from common import *

LDS = 4 * 3 * 4096
DEPTH = 6


def gen(a, stamps=False, idx=(3, 6)):
    for li, (name, hin, xin) in enumerate([("gemm2a_kernel", HF1, X1T), ("gemm2b_kernel", HF2, X3T)]):
        a.head(name)
        if stamps:
            stamp_start(a)
            a(f"s_mov_b32 s87, {STAMPS + idx[li] * 0x10000:#x}")
        a(f"""
        s_mov_b32 s32, {hin:#x}
        s_mov_b32 s33, {xin:#x}
        s_mov_b32 s36, {li}
        s_branch Lg2_body
        """)
    a(".p2align 8")
    a("Lg2_body:")
    mk = Marks(a, stamps)
    a(f"""
    s_cmp_ge_u32 s2, 256
    s_cbranch_scc1 Lg2_end
    s_load_dwordx2 s[4:5], s[0:1], {KA_WS}
    s_load_dwordx2 s[6:7], s[0:1], {KA_B2}
    s_load_dwordx2 s[40:41], s[0:1], {KA_OUT}
    v_and_b32 v1, 63, v0            ; lane
    v_lshrrev_b32 v2, 6, v0         ; wave
    v_lshlrev_b32 v3, 4, v1         ; lane*16
    v_readfirstlane_b32 s3, v2
    s_and_b32 s12, s2, 7
    s_lshr_b32 s13, s2, 3
    s_lshl_b32 s14, s12, 2
    s_and_b32 s15, s13, 3
    s_add_u32 s14, s14, s15         ; ty
    s_lshr_b32 s15, s13, 2          ; cx
    s_lshr_b32 s16, s3, 1           ; wa = w>>1
    s_and_b32 s17, s3, 1            ; wb = w&1
    s_mul_i32 s18, s3, {28*1024}
    s_lshl_b32 s19, s15, 1
    s_add_u32 s20, s19, s16
    s_xor_b32 s21, s20, 1
    s_mul_i32 s22, s20, {112*1024}
    s_mul_i32 s23, s21, {112*1024}
    s_add_u32 s22, s22, s18
    s_add_u32 s23, s23, s18
    s_add_u32 s22, s22, {W2F}
    s_add_u32 s23, s23, {W2F}
    s_lshl_b32 s19, s14, 1
    s_add_u32 s24, s19, s17
    s_xor_b32 s25, s24, 1
    s_mul_i32 s26, s24, {112*1024}
    s_mul_i32 s27, s25, {112*1024}
    s_add_u32 s26, s26, s18
    s_add_u32 s27, s27, s18
    s_add_u32 s26, s26, s32
    s_add_u32 s27, s27, s32
    v_add_u32 v4, s22, v3
    v_add_u32 v5, s23, v3
    v_add_u32 v6, s26, v3
    v_add_u32 v7, s27, v3
    s_waitcnt lgkmcnt(0)
    """)
    a.srd(8, 4, WS_BYTES)
    a.srd(28, 6, 1024)
    a.srd(44, 40, 0x200000)

    a(f"""
    s_mul_i32 s34, s15, 7
    s_lshr_b32 s34, s34, 1
    s_lshl_b32 s34, s34, 10
    """)

    def ld(i):
        slot = (i % DEPTH) * 16
        for q in range(4):
            a(f"buffer_load_dwordx4 a[{slot+4*q}:{slot+4*q+3}], v{4+q}, s[8:11], s34 offen")
        a(f"""
        s_add_u32 s34, s34, 1024
        s_cmp_eq_u32 s34, {28*1024}
        s_cselect_b32 s34, 0, s34
        """)

    a(f"""
    v_lshrrev_b32 v32, 5, v1        ; h
    v_and_b32 v33, 31, v1           ; tok
    v_lshlrev_b32 v34, 3, v32       ; h*8
    s_lshl_b32 s35, s20, 6
    v_lshlrev_b32 v35, 14, v32
    v_lshl_add_u32 v35, v33, 1, v35
    s_lshl_b32 s37, s20, 17
    s_lshl_b32 s38, s24, 6
    s_add_u32 s37, s37, s38
    s_add_u32 s38, s37, s33
    """)
    vm = []

    def ldv(i):
        ld(i)
        vm.extend([("L", i)] * 4)

    epq = [("b", q) for q in range(4)] + [("x", i) for i in range(16)]

    def ep_load():
        k, i = epq.pop(0)
        if k == "b":
            a(f"buffer_load_dwordx2 v[{8+2*i}:{9+2*i}], v34, s[28:31], s35 offen offset:{16*i}")
        else:
            chl = 8 * (i >> 2) + (i & 3)
            a(f"""
            s_add_u32 s39, s38, {chl*4096}
            buffer_load_ushort v{16+i}, v35, s[8:11], s39 offen
            """)
        vm.append(("E",))

    for i in range(DEPTH):
        ldv(i)
    ACC = 64
    for r in range(64):
        a(f"v_mov_b32 v{ACC+r}, 0")
    mk()
    for i in range(28):
        last = max(k for k, t in enumerate(vm) if t == ("L", i))
        a(f"s_waitcnt vmcnt({len(vm) - 1 - last})")
        if i % 4 == 0 or i == 27:
            mk()
        slot = (i % DEPTH) * 16
        order = [(0, 0), (0, 1), (1, 0), (1, 1)] if i < 27 else [(0, 1), (1, 0), (1, 1), (0, 0)]
        for aa, bb in order:
            q = 2 * aa + bb
            a(f"v_mfma_f32_32x32x16_bf16 v[{ACC+16*q}:{ACC+16*q+15}], a[{slot+4*aa}:{slot+4*aa+3}], a[{slot+8+4*bb}:{slot+8+4*bb+3}], v[{ACC+16*q}:{ACC+16*q+15}]")
        if i + DEPTH < 28:
            ldv(i + DEPTH)
        if i >= 8:
            for _ in range(2):
                if epq:
                    ep_load()
    assert not epq
    a("s_waitcnt vmcnt(0)")
    a(f"""
    s_nop 7
    s_nop 3
    """)
    for q in range(1, 4):
        a(f"""
        s_xor_b32 s39, s3, {q}
        s_mul_i32 s39, s39, 12288
        s_add_u32 s39, s39, {(q-1)*4096}
        v_add_u32 v36, s39, v3
        """)
        for r in range(4):
            a(f"ds_write_b128 v36, v[{ACC+16*q+4*r}:{ACC+16*q+4*r+3}] offset:{1024*r}")
    a(f"""
    s_mul_i32 s39, s3, 12288
    v_add_u32 v36, s39, v3
    """)
    for q in range(4):
        for h in range(2):
            a(f"""
            v_lshlrev_b32 v{40+4*q+2*h}, 16, v{8+2*q+h}
            v_and_b32 v{41+4*q+2*h}, 0xffff0000, v{8+2*q+h}
            """)
    for i in range(16):
        a(f"v_lshlrev_b32 v{16+i}, 16, v{16+i}")
    a("""
    s_waitcnt lgkmcnt(0)
    s_barrier
    """)
    mk()
    for q in range(1, 4):
        for r in range(4):
            a(f"ds_read_b128 v[{ACC+16*q+4*r}:{ACC+16*q+4*r+3}], v36 offset:{(q-1)*4096+1024*r}")
    a("s_waitcnt lgkmcnt(0)")
    for i in range(16):
        a(f"""
        v_add_f32 v{ACC+i}, v{ACC+i}, v{ACC+16+i}
        v_add_f32 v{ACC+32+i}, v{ACC+32+i}, v{ACC+48+i}
        """)
    for i in range(16):
        a(f"v_add_f32 v{ACC+i}, v{ACC+i}, v{ACC+32+i}")
    for i in range(0, 16, 2):
        x0, x1 = ACC + i, ACC + i + 1
        a(f"""
        v_cvt_pk_bf16_f32 v37, v{x0}, v{x1}
        v_lshlrev_b32 v{x0}, 16, v37
        v_and_b32 v{x1}, 0xffff0000, v37
        v_add_f32 v{x0}, v{x0}, v{40+i}
        v_add_f32 v{x1}, v{x1}, v{41+i}
        v_cvt_pk_bf16_f32 v37, v{x0}, v{x1}
        v_lshlrev_b32 v{x0}, 16, v37
        v_and_b32 v{x1}, 0xffff0000, v37
        v_add_f32 v{x0}, v{x0}, v{16+i}
        v_add_f32 v{x1}, v{x1}, v{17+i}
        v_cvt_pk_bf16_f32 v{56+i//2}, v{x0}, v{x1}
        """)
    mk()
    a("""
    s_cmp_eq_u32 s36, 0
    s_cbranch_scc0 Lg2_final
    """)
    a(f"s_add_u32 s38, s37, {X2T}")
    for i in range(16):
        chl = 8 * (i >> 2) + (i & 3)
        op = "buffer_store_short" if i % 2 == 0 else "buffer_store_short_d16_hi"
        a(f"""
        s_add_u32 s39, s38, {chl*4096}
        {op} v{56+i//2}, v35, s[8:11], s39 offen
        """)
    a("""
    v_mov_b32 v38, 0
    v_mov_b32 v39, 0
    v_mov_b32 v37, 0x3f803f80
    """)
    for p in range(8):
        a(f"""
        v_dot2_f32_bf16 v38, v{56+p}, v37, v38
        v_dot2_f32_bf16 v39, v{56+p}, v{56+p}, v39
        """)
    a(f"""
    v_lshlrev_b32 v36, 3, v33
    v_lshl_add_u32 v36, v32, 2, v36
    s_lshl_b32 s39, s24, 8
    s_add_u32 s39, s39, {STATS2}
    s_nop 1
    v_permlane32_swap_b32 v38, v39
    s_nop 1
    v_add_f32 v38, v38, v39
    buffer_atomic_add_f32 v38, v36, s[8:11], s39 offen
    s_branch Lg2_fin
    Lg2_final:
    v_lshlrev_b32 v36, 10, v33
    v_add_u32 v36, v36, v34
    s_lshl_b32 s39, s24, 15
    s_add_u32 s39, s39, s35
    """)
    for q in range(4):
        a(f"buffer_store_dwordx2 v[{56+2*q}:{57+2*q}], v36, s[44:47], s39 offen offset:{16*q}")
    a("Lg2_fin:")
    mk()
    if stamps:
        a("v_mov_b32 v5, v2")
        mk.dump(8, None, 5)
        a("v_mov_b32 v2, v5")
        a(f"""
        s_waitcnt vmcnt(0) lgkmcnt(0)
        s_memrealtime s[92:93]
        s_waitcnt lgkmcnt(0)
        v_lshlrev_b32 v2, 4, v2
        v_mov_b32 v3, v1
        v_mov_b32 v0, s90
        v_mov_b32 v1, s92
        s_lshl_b32 s94, s2, 6
        s_add_u32 s94, s94, s87
        v_cmp_eq_u32 vcc, 0, v3
        s_and_saveexec_b64 s[88:89], vcc
        buffer_store_dwordx2 v[0:1], v2, s[8:11], s94 offen
        """)
    a("""
    Lg2_end:
    s_endpgm
    """)
    return kd("gemm2a_kernel", 128 + DEPTH * 16, accum=128) + kd("gemm2b_kernel", 128 + DEPTH * 16, accum=128)
```

```python
import math
from common import *

N_KGEN = 512
WG_XT = 512
WG_ST = 576
WG_W1 = 640
WG_W2 = 696
WG_Z = 752
N_PREP = 753
PREP_LDS = 18432

LOG2E = 1.4426950408889634
INV2PI = 1.0 / (2.0 * math.pi)
INV2PI_HI = struct.unpack("<f", struct.pack("<I", 0x3e22f983))[0]
INV2PI_LO = INV2PI - INV2PI_HI


def gen_prep(a, stamps=False, idx=0):
    a.head("prep_kernel")
    if stamps:
        stamp_start(a)
    a(f"""
    s_cmp_ge_u32 s2, {N_PREP}
    s_cbranch_scc1 Lprep_end
    s_load_dwordx2 s[4:5], s[0:1], {KA_WS}
    v_mov_b32 v127, v0
    v_and_b32 v1, 63, v0            ; lane
    v_lshrrev_b32 v2, 6, v0         ; wave
    s_nop 0
    v_readfirstlane_b32 s3, v2
    s_cmp_ge_u32 s2, {WG_XT}
    s_cbranch_scc1 Lprep_other
    """)
    PB, TB, TBH = 0, 4096, 16384
    a(f"""
    s_load_dwordx8 s[12:19], s[0:1], {KA_LOGA}
    s_load_dwordx2 s[20:21], s[0:1], {KA_LOGDT}
    v_and_b32 v3, 31, v0            ; n_local
    v_lshl_add_u32 v4, v2, 5, v3    ; n
    s_lshl_b32 s22, s2, 8
    v_lshl_add_u32 v4, v4, 1, s22
    s_lshl_b32 s23, s2, 1
    v_mov_b32 v9, s23
    s_waitcnt lgkmcnt(0)
    global_load_ushort v5, v4, s[12:13]
    global_load_ushort v6, v4, s[14:15]
    global_load_ushort v7, v4, s[16:17]
    global_load_ushort v8, v4, s[18:19]
    global_load_ushort v9, v9, s[20:21]
    """)
    a.srd(8, 4, WS_BYTES)
    a(f"""
    v_and_b32 v30, 15, v1
    v_lshrrev_b32 v31, 4, v1
    ; pV = 8*i
    v_lshlrev_b32 v32, 3, v30
    v_cvt_f32_u32 v32, v32
    ; pA0 = 128*(i>>3) + (i&7)
    v_lshrrev_b32 v40, 3, v30
    v_and_b32 v41, 7, v30
    v_lshl_add_u32 v33, v40, 7, v41
    v_cvt_f32_u32 v33, v33
    v_lshrrev_b32 v42, 2, v30
    v_and_b32 v43, 3, v30
    v_lshlrev_b32 v42, 7, v42
    v_lshl_add_u32 v42, v43, 1, v42
    v_add_u32 v42, 0x100, v42
    v_lshrrev_b32 v43, 1, v41
    v_and_b32 v44, 1, v41
    v_lshlrev_b32 v43, 7, v43
    v_lshl_add_u32 v43, v44, 2, v43
    v_add_u32 v43, 0x200, v43
    v_cmp_gt_u32 vcc, 8, v30
    s_nop 1
    v_cndmask_b32 v34, v43, v42, vcc
    v_cvt_f32_u32 v34, v34
    v_lshlrev_b32 v42, 7, v30
    v_add_u32 v42, 0x400, v42
    v_mov_b32 v43, 0x800
    v_cndmask_b32 v35, v43, v42, vcc
    v_cvt_f32_u32 v35, v35
    v_lshlrev_b32 v36, 10, v2
    v_lshl_add_u32 v37, v31, 5, v36
    v_lshl_add_u32 v36, v3, 5, v36
    v_mul_u32_u24 v45, 3072, v2
    v_add_u32 v45, {TB}, v45
    v_lshrrev_b32 v42, 1, v31
    v_and_b32 v43, 1, v31
    v_lshlrev_b32 v42, 7, v42
    v_lshl_add_u32 v42, v43, 2, v42
    v_lshl_add_u32 v42, v30, 3, v42
    v_lshl_add_u32 v46, v42, 2, v45          ; addr m0
    v_cmp_gt_u32 vcc, 2, v31
    v_lshlrev_b32 v42, 2, v30
    v_lshlrev_b32 v43, 1, v30
    v_cndmask_b32 v42, v43, v42, vcc
    v_lshl_add_u32 v42, v31, 6, v42
    v_add_u32 v42, 0x100, v42
    v_lshl_add_u32 v47, v42, 2, v45          ; addr m1 A
    v_mov_b32 v43, 128
    v_mov_b32 v44, 8
    v_cndmask_b32 v43, v43, v44, vcc
    v_add_u32 v48, v47, v43                  ; addr m1 B
    ; m2: q = 512 + 64kk + 16r + b
    v_lshl_add_u32 v42, v31, 6, v30
    v_add_u32 v42, 0x200, v42
    v_lshl_add_u32 v49, v42, 2, v45
    """)
    a(f"""
    v_lshlrev_b32 v42, 3, v0
    v_sub_u32 v42, 2096, v42        ; l0 for e=0
    v_mov_b32 v44, {TBH + 2 * 768}
    s_movk_i32 s24, 17024
    """)
    for e in range(0, 8, 2):
        a(f"""
        v_subrev_u32 v50, {e}, v42
        v_subrev_u32 v51, {e+1}, v42
        v_cvt_f32_u32 v40, v50
        v_cvt_f32_u32 v41, v51
        v_cvt_pk_bf16_f32 v40, v40, v41
        v_lshrrev_b32 v41, 16, v40
        v_and_b32 v40, 0xffff, v40
        v_subrev_u32 v40, s24, v40
        v_subrev_u32 v41, s24, v41
        v_cmp_gt_u32 vcc, 128, v50
        s_nop 1
        v_cndmask_b32 v40, v40, v50, vcc
        v_cmp_gt_u32 vcc, 128, v51
        s_nop 1
        v_cndmask_b32 v41, v41, v51, vcc
        v_lshlrev_b32 v40, 1, v40
        v_lshlrev_b32 v41, 1, v41
        v_add_u32 v40, {TBH}, v40
        v_add_u32 v41, {TBH}, v41
        v_cmp_gt_u32 vcc, 0x800, v50
        s_nop 1
        v_cndmask_b32 v{52+e}, v44, v40, vcc
        v_cmp_gt_u32 vcc, 0x800, v51
        s_nop 1
        v_cndmask_b32 v{53+e}, v44, v41, vcc
        """)
    a("v_subrev_u32 v42, 0x800, v42")
    for e in range(8):
        a(f"""
        v_subrev_u32 v50, {e}, v42
        v_lshlrev_b32 v40, 1, v50
        v_add_u32 v40, {TBH}, v40
        v_cmp_gt_u32 vcc, 64, v50
        s_nop 1
        v_cndmask_b32 v{60+e}, v44, v40, vcc
        """)
    a(f"""
    s_mov_b32 s25, {fhex(INV2PI_HI)}
    s_waitcnt vmcnt(0)
    v_lshlrev_b32 v5, 16, v5
    v_lshlrev_b32 v6, 16, v6
    v_lshlrev_b32 v7, 16, v7
    v_lshlrev_b32 v8, 16, v8
    v_lshlrev_b32 v9, 16, v9
    v_mul_f32 v9, {fhex(LOG2E)}, v9
    v_mul_f32 v5, {fhex(LOG2E)}, v5
    v_exp_f32 v9, v9
    v_exp_f32 v5, v5
    s_nop 0
    v_cvt_pk_bf16_f32 v9, v9, v5
    v_and_b32 v5, 0xffff0000, v9
    v_lshlrev_b32 v9, 16, v9
    v_mul_f32 v5, v5, v9
    v_mul_f32 v16, {fhex(-LOG2E)}, v5     ; a2
    v_mul_f32 v6, v6, v9
    v_mul_f32 v11, s25, v6           ; hi
    v_fma_f32 v18, v6, s25, -v11     ; err
    v_fmac_f32 v18, {fhex(INV2PI_LO)}, v6
    v_and_b32 v17, 0xffffff00, v11   ; b2h
    v_sub_f32 v14, v11, v17
    v_add_f32 v18, v18, v14          ; b2l
    v_add_f32 v9, v9, v9             ; 2*dt
    v_mul_f32 v19, v7, v9            ; cr2
    v_mul_f32 v20, v8, v9            ; ci2
    ds_write_b128 v36, v[16:19]
    ds_write_b32 v36, v20 offset:16
    """)
    ACC = 100
    for r in range(12):
        a(f"v_mov_b32 v{ACC+r}, 0")
    a("s_waitcnt lgkmcnt(0)")

    def read_params(P, off):
        a(f"""
        ds_read_b128 v[{P}:{P+3}], v37 offset:{off}
        ds_read_b32 v{P+4}, v37 offset:{off+16}
        """)

    def ev(P, p, zr, zi, t):
        a(f"""
        v_mul_f32 v{t}, v{P}, v{p}
        v_mul_f32 v{t+1}, v{P+1}, v{p}
        v_exp_f32 v{t}, v{t}
        v_fract_f32 v{t+1}, v{t+1}
        v_fmac_f32 v{t+1}, v{P+2}, v{p}
        v_cos_f32 v{t+2}, v{t+1}
        v_sin_f32 v{t+3}, v{t+1}
        s_nop 0
        v_mul_f32 v{zr}, v{t}, v{t+2}
        v_mul_f32 v{zi}, v{t}, v{t+3}
        """)

    def step(P):
        ev(P, 32, 80, 81, 72)
        a(f"""
        v_mul_f32 v82, v{P+3}, v80
        v_mul_f32 v83, v{P+3}, v81
        v_fma_f32 v82, -v{P+4}, v81, v82
        v_fma_f32 v83, -v{P+4}, v80, -v83
        """)
        for m in range(3):
            zr, zi = 84 + 2 * m, 85 + 2 * m
            ev(P, 33 + m, zr, zi, 76)
            a(f"""
            s_nop 1
            v_mfma_f32_16x16x4_f32 v[{ACC+4*m}:{ACC+4*m+3}], v{zr}, v82, v[{ACC+4*m}:{ACC+4*m+3}]
            v_mfma_f32_16x16x4_f32 v[{ACC+4*m}:{ACC+4*m+3}], v{zi}, v83, v[{ACC+4*m}:{ACC+4*m+3}]
            """)

    P0, P1 = 90, 112
    read_params(P0, 0)
    a("s_mov_b32 s26, 0")
    a("Lkg_loop:")
    read_params(P1, 128)
    a("s_waitcnt lgkmcnt(2)")
    step(P0)
    a("v_add_u32 v37, 256, v37")
    read_params(P0, 0)
    a("s_waitcnt lgkmcnt(2)")
    step(P1)
    a("""
    s_add_u32 s26, s26, 1
    s_cmp_lt_u32 s26, 4
    s_cbranch_scc1 Lkg_loop
    s_nop 15
    """)
    a(f"""
    ds_write_b128 v46, v[{ACC}:{ACC+3}]
    ds_write_b64 v47, v[{ACC+4}:{ACC+5}]
    ds_write_b64 v48, v[{ACC+6}:{ACC+7}]
    ds_write_b32 v49, v{ACC+8}
    ds_write_b32 v49, v{ACC+9} offset:64
    ds_write_b32 v49, v{ACC+10} offset:128
    ds_write_b32 v49, v{ACC+11} offset:192
    v_lshlrev_b32 v40, 2, v0
    v_lshlrev_b32 v41, 1, v0
    v_mov_b32 v42, 0
    ds_write_b16 v44, v42
    s_waitcnt lgkmcnt(0)
    s_barrier
    """)
    for j in range(3):
        for w in range(4):
            a(f"ds_read_b32 v{72+4*j+w}, v40 offset:{TB + w*3072 + j*1024}")
    a("s_waitcnt lgkmcnt(0)")
    for j in range(3):
        b = 72 + 4 * j
        a(f"""
        v_add_f32 v{b}, v{b}, v{b+1}
        v_add_f32 v{b+2}, v{b+2}, v{b+3}
        v_add_f32 v{b}, v{b}, v{b+2}
        v_cvt_pk_bf16_f32 v{b}, v{b}, v{b}
        ds_write_b16 v41, v{b} offset:{TBH + j*512}
        """)
    a("""
    s_waitcnt lgkmcnt(0)
    s_barrier
    """)
    for e in range(8):
        a(f"ds_read_u16 v{72+e}, v{52+e}")
    a("s_waitcnt lgkmcnt(0)")
    for e in range(8):
        a(f"ds_read_u16 v{80+e}, v{60+e}")
    for e in range(4):
        a(f"v_lshl_or_b32 v{88+e}, v{73+2*e}, 16, v{72+2*e}")
    a(f"""
    s_mul_i32 s27, s2, {KSTRIDE}
    s_add_u32 s27, s27, {KBUF + 16}
    v_lshlrev_b32 v40, 4, v0
    buffer_store_dwordx4 v[88:91], v40, s[8:11], s27 offen
    s_waitcnt lgkmcnt(0)
    """)
    for e in range(4):
        a(f"v_lshl_or_b32 v{92+e}, v{81+2*e}, 16, v{80+2*e}")
    a(f"""
    s_add_u32 s27, s27, 4096
    v_cmp_gt_u32 vcc, 10, v0
    s_and_saveexec_b64 s[28:29], vcc
    s_cbranch_execz Lprep_fin
    buffer_store_dwordx4 v[92:95], v40, s[8:11], s27 offen
    s_branch Lprep_fin
    """)

    a(f"""
    Lprep_other:
    s_cmp_ge_u32 s2, {WG_ST}
    s_cbranch_scc1 Lprep_st
    """)
    a(f"""
    s_load_dwordx2 s[6:7], s[0:1], {KA_U}
    s_sub_u32 s20, s2, {WG_XT}
    s_lshl_b32 s20, s20, 2
    s_add_u32 s20, s20, s3
    s_and_b32 s21, s20, 7           ; cb
    s_lshr_b32 s22, s20, 3          ; tb
    s_lshl_b32 s23, s21, 6
    v_add_u32 v3, s23, v1           ; channel
    s_lshl_b32 s24, s22, 16
    v_lshlrev_b32 v4, 1, v3
    v_add_u32 v4, s24, v4
    v_lshlrev_b32 v5, 12, v3        ; channel*4096
    s_lshl_b32 s25, s22, 7
    s_add_u32 s25, s25, {X0T}
    s_waitcnt lgkmcnt(0)
    """)
    a.srd(8, 4, WS_BYTES)
    a.srd(12, 6, 0x200000)
    for half in range(2):
        for e in range(32):
            ee = half * 32 + e
            if ee % 4 == 0:
                a(f"s_mov_b32 s26, {(ee // 4) * 4096}")
            a(f"buffer_load_ushort v{16+ee}, v4, s[12:15], s26 offen offset:{(ee % 4) * 1024}")
    for o in range(8):
        a(f"s_waitcnt vmcnt({min(63, 56 - 8 * o + o)})")
        for j in range(4):
            a(f"v_lshl_or_b32 v{88+4*o+j}, v{16+8*o+2*j+1}, 16, v{16+8*o+2*j}")
        a(f"buffer_store_dwordx4 v[{88+4*o}:{88+4*o+3}], v5, s[8:11], s25 offen offset:{16*o}")
    a("s_branch Lprep_fin")

    a(f"""
    Lprep_st:
    s_cmp_ge_u32 s2, {WG_W1}
    s_cbranch_scc1 Lprep_w1
    s_load_dwordx2 s[6:7], s[0:1], {KA_U}
    s_sub_u32 s20, s2, {WG_ST}
    s_lshl_b32 s20, s20, 2
    s_add_u32 s20, s20, s3          ; wt
    s_lshl_b32 s20, s20, 3
    v_lshrrev_b32 v3, 3, v1
    v_add_u32 v3, s20, v3           ; row
    v_and_b32 v4, 7, v1             ; part
    v_lshlrev_b32 v5, 10, v3
    v_lshl_add_u32 v5, v4, 4, v5
    v_mov_b32 v6, 0x3f803f80
    v_mov_b32 v8, 0
    v_mov_b32 v9, 0
    s_waitcnt lgkmcnt(0)
    """)
    a.srd(8, 4, WS_BYTES)
    a.srd(12, 6, 0x200000)
    for j in range(8):
        a(f"buffer_load_dwordx4 v[{16+4*j}:{19+4*j}], v5, s[12:15], 0 offen offset:{128*j}")
    for j in range(8):
        a(f"s_waitcnt vmcnt({7-j})")
        for r in range(4):
            a(f"""
            v_dot2_f32_bf16 v8, v{16+4*j+r}, v6, v8
            v_dot2_f32_bf16 v9, v{16+4*j+r}, v{16+4*j+r}, v9
            """)
    a(f"""
    s_nop 3
    v_add_f32_dpp v8, v8, v8 quad_perm:[1,0,3,2] row_mask:0xf bank_mask:0xf
    v_add_f32_dpp v9, v9, v9 quad_perm:[1,0,3,2] row_mask:0xf bank_mask:0xf
    s_nop 1
    v_add_f32_dpp v8, v8, v8 quad_perm:[2,3,0,1] row_mask:0xf bank_mask:0xf
    v_add_f32_dpp v9, v9, v9 quad_perm:[2,3,0,1] row_mask:0xf bank_mask:0xf
    s_nop 1
    v_add_f32_dpp v8, v8, v8 row_half_mirror row_mask:0xf bank_mask:0xf
    v_add_f32_dpp v9, v9, v9 row_half_mirror row_mask:0xf bank_mask:0xf
    v_lshlrev_b32 v10, 3, v3
    s_mov_b32 s21, {STATS0}
    v_cmp_eq_u32 vcc, 0, v4
    s_and_saveexec_b64 s[28:29], vcc
    buffer_store_dwordx2 v[8:9], v10, s[8:11], s21 offen
    s_branch Lprep_fin
    """)

    a(f"""
    Lprep_w1:
    s_cmp_ge_u32 s2, {WG_W2}
    s_cbranch_scc1 Lprep_w2
    s_load_dwordx2 s[6:7], s[0:1], {KA_W1}
    s_sub_u32 s20, s2, {WG_W1}      ; ft
    v_and_b32 v3, 31, v1            ; f
    v_lshrrev_b32 v4, 5, v1         ; g
    v_mul_u32_u24 v5, 28672, v4
    s_lshl_b32 s21, s20, 6          ; ft*32*2
    s_mul_i32 s22, s3, {8*16*3584}
    s_add_u32 s21, s21, s22
    v_lshl_add_u32 v5, v3, 1, v5
    v_add_u32 v5, s21, v5
    v_lshlrev_b32 v6, 4, v1         ; lane*16
    s_lshl_b32 s23, s20, 15
    s_add_u32 s23, s23, {W1F}
    s_lshl_b32 s24, s3, 13          ; w*8*1024
    s_add_u32 s24, s24, s23
    v_mov_b32 v7, 0x3f803f80
    v_mov_b32 v8, 0
    s_waitcnt lgkmcnt(0)
    """)
    a.srd(8, 4, WS_BYTES)
    a.srd(12, 6, 512 * 1792 * 2)
    for ks in range(8):
        for e in range(8):
            a(f"""
            s_mov_b32 s26, {(16*ks+e)*3584}
            buffer_load_ushort v{16+8*ks+e}, v5, s[12:15], s26 offen
            """)
    for ks in range(8):
        a(f"s_waitcnt vmcnt({min(63, 56 - 8 * ks + ks)})")
        for j in range(4):
            a(f"v_lshl_or_b32 v{88+4*ks+j}, v{16+8*ks+2*j+1}, 16, v{16+8*ks+2*j}")
        a(f"s_add_u32 s25, s24, {(ks//4)*4096}")
        a(f"buffer_store_dwordx4 v[{88+4*ks}:{88+4*ks+3}], v6, s[8:11], s25 offen offset:{(ks%4)*1024}")
        for j in range(4):
            a(f"v_dot2_f32_bf16 v8, v{88+4*ks+j}, v7, v8")
    a(f"""
    s_nop 3
    v_lshlrev_b32 v9, 2, v0
    ds_write_b32 v9, v8
    s_waitcnt lgkmcnt(0)
    s_barrier
    s_cmp_lg_u32 s3, 0
    s_cbranch_scc1 Lprep_fin
    v_lshlrev_b32 v9, 2, v3
    """)
    for j in range(8):
        a(f"ds_read_b32 v{16+j}, v9 offset:{128*j}")
    a(f"""
    s_waitcnt lgkmcnt(0)
    v_add_f32 v16, v16, v17
    v_add_f32 v18, v18, v19
    v_add_f32 v20, v20, v21
    v_add_f32 v22, v22, v23
    v_add_f32 v16, v16, v18
    v_add_f32 v20, v20, v22
    v_add_f32 v16, v16, v20          ; colsum
    s_lshl_b32 s25, s20, 7
    s_add_u32 s25, s25, {CSUM}
    v_cmp_gt_u32 vcc, 32, v1
    s_and_saveexec_b64 s[28:29], vcc
    buffer_store_dword v16, v9, s[8:11], s25 offen
    s_branch Lprep_fin
    """)

    a(f"""
    Lprep_w2:
    s_cmp_ge_u32 s2, {WG_Z}
    s_cbranch_scc1 Lprep_z
    s_load_dwordx2 s[6:7], s[0:1], {KA_W2}
    s_sub_u32 s20, s2, {WG_W2}
    s_lshl_b32 s20, s20, 2
    s_add_u32 s20, s20, s3          ; wt 0..223
    s_mul_i32 s21, s20, 4682
    s_lshr_b32 s21, s21, 16
    s_mul_i32 s22, s21, 14
    s_sub_u32 s22, s20, s22         ; wt%14
    v_and_b32 v3, 31, v1            ; c
    v_lshrrev_b32 v4, 5, v1         ; g
    v_lshlrev_b32 v5, 12, v4        ; g*4096
    v_lshl_add_u32 v5, v3, 1, v5
    s_lshl_b32 s23, s21, 6
    s_lshl_b32 s24, s22, 17         ; ks0*16384 = (wt%14)*8*16384
    s_add_u32 s23, s23, s24
    v_add_u32 v5, s23, v5
    v_lshlrev_b32 v6, 4, v1
    s_lshl_b32 s24, s20, 13
    s_add_u32 s24, s24, {W2F}
    s_waitcnt lgkmcnt(0)
    """)
    a.srd(8, 4, WS_BYTES)
    a.srd(12, 6, 512 * 1792 * 2)
    for i in range(8):
        for e in range(8):
            if e % 4 == 0:
                a(f"s_mov_b32 s26, {(16*i+8*(e//4))*1024}")
            a(f"buffer_load_ushort v{16+8*i+e}, v5, s[12:15], s26 offen offset:{(e%4)*1024}")
    for i in range(8):
        a(f"s_waitcnt vmcnt({min(63, 56 - 8 * i + i)})")
        for j in range(4):
            a(f"v_lshl_or_b32 v{88+4*i+j}, v{16+8*i+2*j+1}, 16, v{16+8*i+2*j}")
        a(f"s_add_u32 s25, s24, {(i//4)*4096}")
        a(f"buffer_store_dwordx4 v[{88+4*i}:{88+4*i+3}], v6, s[8:11], s25 offen offset:{(i%4)*1024}")
    a("s_branch Lprep_fin")

    a(f"""
    Lprep_z:
    s_waitcnt lgkmcnt(0)
    """)
    a.srd(8, 4, WS_BYTES)
    a(f"""
    v_lshlrev_b32 v3, 4, v0
    v_mov_b32 v4, 0
    v_mov_b32 v5, 0
    v_mov_b32 v6, 0
    v_mov_b32 v7, 0
    """)
    for j in range(4):
        a(f"""
        s_mov_b32 s20, {STATS2 + 4096*j}
        buffer_store_dwordx4 v[4:7], v3, s[8:11], s20 offen
        """)
    a("Lprep_fin:")
    if stamps:
        stamp_end(a, idx, 8, vtmp=120, tid_saved=127)
    a("""
    Lprep_end:
    s_endpgm
    """)
    return kd("prep_kernel", 128)
```

```python
import math
from common import *

N_KGEN = 512
WG_XT = 512
WG_ST = 576
WG_W1 = 640
WG_W2 = 696
WG_Z = 752
WG_PF = 753
N_PREP = 761
PREP_LDS = 18432

LOG2E = 1.4426950408889634
INV2PI = 1.0 / (2.0 * math.pi)
INV2PI_HI = struct.unpack("<f", struct.pack("<I", 0x3e22f983))[0]
INV2PI_LO = INV2PI - INV2PI_HI


def gen_prep(a, stamps=False, idx=0):
    a.head("prep_kernel")
    if stamps:
        stamp_start(a)
    a(f"""
    s_cmp_ge_u32 s2, {N_PREP}
    s_cbranch_scc1 Lprep_end
    s_load_dwordx2 s[4:5], s[0:1], {KA_WS}
    v_mov_b32 v127, v0
    v_and_b32 v1, 63, v0            ; lane
    v_lshrrev_b32 v2, 6, v0         ; wave
    s_nop 0
    v_readfirstlane_b32 s3, v2
    s_cmp_ge_u32 s2, {WG_XT}
    s_cbranch_scc1 Lprep_other
    """)
    PB, TB, TBH = 0, 4096, 16384
    a(f"""
    s_load_dwordx8 s[12:19], s[0:1], {KA_LOGA}
    s_load_dwordx2 s[20:21], s[0:1], {KA_LOGDT}
    v_and_b32 v3, 31, v0            ; n_local
    v_lshl_add_u32 v4, v2, 5, v3    ; n
    s_lshl_b32 s22, s2, 8
    v_lshl_add_u32 v4, v4, 1, s22
    s_lshl_b32 s23, s2, 1
    v_mov_b32 v9, s23
    s_waitcnt lgkmcnt(0)
    global_load_ushort v5, v4, s[12:13]
    global_load_ushort v6, v4, s[14:15]
    global_load_ushort v7, v4, s[16:17]
    global_load_ushort v8, v4, s[18:19]
    global_load_ushort v9, v9, s[20:21]
    """)
    a.srd(8, 4, WS_BYTES)
    a(f"""
    v_and_b32 v30, 15, v1
    v_lshrrev_b32 v31, 4, v1
    ; pV = 8*i
    v_lshlrev_b32 v32, 3, v30
    v_cvt_f32_u32 v32, v32
    ; pA0 = 128*(i>>3) + (i&7)
    v_lshrrev_b32 v40, 3, v30
    v_and_b32 v41, 7, v30
    v_lshl_add_u32 v33, v40, 7, v41
    v_cvt_f32_u32 v33, v33
    v_lshrrev_b32 v42, 2, v30
    v_and_b32 v43, 3, v30
    v_lshlrev_b32 v42, 7, v42
    v_lshl_add_u32 v42, v43, 1, v42
    v_add_u32 v42, 0x100, v42
    v_lshrrev_b32 v43, 1, v41
    v_and_b32 v44, 1, v41
    v_lshlrev_b32 v43, 7, v43
    v_lshl_add_u32 v43, v44, 2, v43
    v_add_u32 v43, 0x200, v43
    v_cmp_gt_u32 vcc, 8, v30
    s_nop 1
    v_cndmask_b32 v34, v43, v42, vcc
    v_cvt_f32_u32 v34, v34
    v_lshlrev_b32 v42, 7, v30
    v_add_u32 v42, 0x400, v42
    v_mov_b32 v43, 0x800
    v_cndmask_b32 v35, v43, v42, vcc
    v_cvt_f32_u32 v35, v35
    v_lshlrev_b32 v36, 10, v2
    v_lshl_add_u32 v37, v31, 5, v36
    v_lshl_add_u32 v36, v3, 5, v36
    v_mul_u32_u24 v45, 3072, v2
    v_add_u32 v45, {TB}, v45
    v_lshrrev_b32 v42, 1, v31
    v_and_b32 v43, 1, v31
    v_lshlrev_b32 v42, 7, v42
    v_lshl_add_u32 v42, v43, 2, v42
    v_lshl_add_u32 v42, v30, 3, v42
    v_lshl_add_u32 v46, v42, 2, v45          ; addr m0
    v_cmp_gt_u32 vcc, 2, v31
    v_lshlrev_b32 v42, 2, v30
    v_lshlrev_b32 v43, 1, v30
    v_cndmask_b32 v42, v43, v42, vcc
    v_lshl_add_u32 v42, v31, 6, v42
    v_add_u32 v42, 0x100, v42
    v_lshl_add_u32 v47, v42, 2, v45          ; addr m1 A
    v_mov_b32 v43, 128
    v_mov_b32 v44, 8
    v_cndmask_b32 v43, v43, v44, vcc
    v_add_u32 v48, v47, v43                  ; addr m1 B
    ; m2: q = 512 + 64kk + 16r + b
    v_lshl_add_u32 v42, v31, 6, v30
    v_add_u32 v42, 0x200, v42
    v_lshl_add_u32 v49, v42, 2, v45
    """)
    a(f"""
    v_lshlrev_b32 v42, 3, v0
    v_sub_u32 v42, 2096, v42        ; l0 for e=0
    v_mov_b32 v44, {TBH + 2 * 768}
    s_movk_i32 s24, 17024
    """)
    for e in range(0, 8, 2):
        a(f"""
        v_subrev_u32 v50, {e}, v42
        v_subrev_u32 v51, {e+1}, v42
        v_cvt_f32_u32 v40, v50
        v_cvt_f32_u32 v41, v51
        v_cvt_pk_bf16_f32 v40, v40, v41
        v_lshrrev_b32 v41, 16, v40
        v_and_b32 v40, 0xffff, v40
        v_subrev_u32 v40, s24, v40
        v_subrev_u32 v41, s24, v41
        v_cmp_gt_u32 vcc, 128, v50
        s_nop 1
        v_cndmask_b32 v40, v40, v50, vcc
        v_cmp_gt_u32 vcc, 128, v51
        s_nop 1
        v_cndmask_b32 v41, v41, v51, vcc
        v_lshlrev_b32 v40, 1, v40
        v_lshlrev_b32 v41, 1, v41
        v_add_u32 v40, {TBH}, v40
        v_add_u32 v41, {TBH}, v41
        v_cmp_gt_u32 vcc, 0x800, v50
        s_nop 1
        v_cndmask_b32 v{52+e}, v44, v40, vcc
        v_cmp_gt_u32 vcc, 0x800, v51
        s_nop 1
        v_cndmask_b32 v{53+e}, v44, v41, vcc
        """)
    a("v_subrev_u32 v42, 0x800, v42")
    for e in range(8):
        a(f"""
        v_subrev_u32 v50, {e}, v42
        v_lshlrev_b32 v40, 1, v50
        v_add_u32 v40, {TBH}, v40
        v_cmp_gt_u32 vcc, 64, v50
        s_nop 1
        v_cndmask_b32 v{60+e}, v44, v40, vcc
        """)
    a(f"""
    s_mov_b32 s25, {fhex(INV2PI_HI)}
    s_waitcnt vmcnt(0)
    v_lshlrev_b32 v5, 16, v5
    v_lshlrev_b32 v6, 16, v6
    v_lshlrev_b32 v7, 16, v7
    v_lshlrev_b32 v8, 16, v8
    v_lshlrev_b32 v9, 16, v9
    v_mul_f32 v9, {fhex(LOG2E)}, v9
    v_mul_f32 v5, {fhex(LOG2E)}, v5
    v_exp_f32 v9, v9
    v_exp_f32 v5, v5
    s_nop 0
    v_cvt_pk_bf16_f32 v9, v9, v5
    v_and_b32 v5, 0xffff0000, v9
    v_lshlrev_b32 v9, 16, v9
    v_mul_f32 v5, v5, v9
    v_mul_f32 v16, {fhex(-LOG2E)}, v5     ; a2
    v_mul_f32 v6, v6, v9
    v_mul_f32 v11, s25, v6           ; hi
    v_fma_f32 v18, v6, s25, -v11     ; err
    v_fmac_f32 v18, {fhex(INV2PI_LO)}, v6
    v_and_b32 v17, 0xffffff00, v11   ; b2h
    v_sub_f32 v14, v11, v17
    v_add_f32 v18, v18, v14          ; b2l
    v_add_f32 v9, v9, v9             ; 2*dt
    v_mul_f32 v19, v7, v9            ; cr2
    v_mul_f32 v20, v8, v9            ; ci2
    ds_write_b128 v36, v[16:19]
    ds_write_b32 v36, v20 offset:16
    """)
    ACC = 100
    for r in range(12):
        a(f"v_mov_b32 v{ACC+r}, 0")
    a("s_waitcnt lgkmcnt(0)")

    def read_params(P, off):
        a(f"""
        ds_read_b128 v[{P}:{P+3}], v37 offset:{off}
        ds_read_b32 v{P+4}, v37 offset:{off+16}
        """)

    def ev(P, p, zr, zi, t):
        a(f"""
        v_mul_f32 v{t}, v{P}, v{p}
        v_mul_f32 v{t+1}, v{P+1}, v{p}
        v_exp_f32 v{t}, v{t}
        v_fract_f32 v{t+1}, v{t+1}
        v_fmac_f32 v{t+1}, v{P+2}, v{p}
        v_cos_f32 v{t+2}, v{t+1}
        v_sin_f32 v{t+3}, v{t+1}
        s_nop 0
        v_mul_f32 v{zr}, v{t}, v{t+2}
        v_mul_f32 v{zi}, v{t}, v{t+3}
        """)

    def step(P):
        ev(P, 32, 80, 81, 72)
        a(f"""
        v_mul_f32 v82, v{P+3}, v80
        v_mul_f32 v83, v{P+3}, v81
        v_fma_f32 v82, -v{P+4}, v81, v82
        v_fma_f32 v83, -v{P+4}, v80, -v83
        """)
        for m in range(3):
            zr, zi = 84 + 2 * m, 85 + 2 * m
            ev(P, 33 + m, zr, zi, 76)
            a(f"""
            s_nop 1
            v_mfma_f32_16x16x4_f32 v[{ACC+4*m}:{ACC+4*m+3}], v{zr}, v82, v[{ACC+4*m}:{ACC+4*m+3}]
            v_mfma_f32_16x16x4_f32 v[{ACC+4*m}:{ACC+4*m+3}], v{zi}, v83, v[{ACC+4*m}:{ACC+4*m+3}]
            """)

    P0, P1 = 90, 112
    read_params(P0, 0)
    a("s_mov_b32 s26, 0")
    a("Lkg_loop:")
    read_params(P1, 128)
    a("s_waitcnt lgkmcnt(2)")
    step(P0)
    a("v_add_u32 v37, 256, v37")
    read_params(P0, 0)
    a("s_waitcnt lgkmcnt(2)")
    step(P1)
    a("""
    s_add_u32 s26, s26, 1
    s_cmp_lt_u32 s26, 4
    s_cbranch_scc1 Lkg_loop
    s_nop 15
    """)
    a(f"""
    ds_write_b128 v46, v[{ACC}:{ACC+3}]
    ds_write_b64 v47, v[{ACC+4}:{ACC+5}]
    ds_write_b64 v48, v[{ACC+6}:{ACC+7}]
    ds_write_b32 v49, v{ACC+8}
    ds_write_b32 v49, v{ACC+9} offset:64
    ds_write_b32 v49, v{ACC+10} offset:128
    ds_write_b32 v49, v{ACC+11} offset:192
    v_lshlrev_b32 v40, 2, v0
    v_lshlrev_b32 v41, 1, v0
    v_mov_b32 v42, 0
    ds_write_b16 v44, v42
    s_waitcnt lgkmcnt(0)
    s_barrier
    """)
    for j in range(3):
        for w in range(4):
            a(f"ds_read_b32 v{72+4*j+w}, v40 offset:{TB + w*3072 + j*1024}")
    a("s_waitcnt lgkmcnt(0)")
    for j in range(3):
        b = 72 + 4 * j
        a(f"""
        v_add_f32 v{b}, v{b}, v{b+1}
        v_add_f32 v{b+2}, v{b+2}, v{b+3}
        v_add_f32 v{b}, v{b}, v{b+2}
        v_cvt_pk_bf16_f32 v{b}, v{b}, v{b}
        ds_write_b16 v41, v{b} offset:{TBH + j*512}
        """)
    a("""
    s_waitcnt lgkmcnt(0)
    s_barrier
    """)
    for e in range(8):
        a(f"ds_read_u16 v{72+e}, v{52+e}")
    a("s_waitcnt lgkmcnt(0)")
    for e in range(8):
        a(f"ds_read_u16 v{80+e}, v{60+e}")
    for e in range(4):
        a(f"v_lshl_or_b32 v{88+e}, v{73+2*e}, 16, v{72+2*e}")
    a(f"""
    s_mul_i32 s27, s2, {KSTRIDE}
    s_add_u32 s27, s27, {KBUF + 16}
    v_lshlrev_b32 v40, 4, v0
    buffer_store_dwordx4 v[88:91], v40, s[8:11], s27 offen
    s_waitcnt lgkmcnt(0)
    """)
    for e in range(4):
        a(f"v_lshl_or_b32 v{92+e}, v{81+2*e}, 16, v{80+2*e}")
    a(f"""
    s_add_u32 s27, s27, 4096
    v_cmp_gt_u32 vcc, 10, v0
    s_and_saveexec_b64 s[28:29], vcc
    s_cbranch_execz Lprep_fin
    buffer_store_dwordx4 v[92:95], v40, s[8:11], s27 offen
    s_branch Lprep_fin
    """)

    a(f"""
    Lprep_other:
    s_cmp_ge_u32 s2, {WG_ST}
    s_cbranch_scc1 Lprep_st
    """)
    a(f"""
    s_load_dwordx2 s[6:7], s[0:1], {KA_U}
    s_sub_u32 s20, s2, {WG_XT}
    s_lshl_b32 s20, s20, 2
    s_add_u32 s20, s20, s3
    s_and_b32 s21, s20, 7           ; cb
    s_lshr_b32 s22, s20, 3          ; tb
    s_lshl_b32 s23, s21, 6
    v_add_u32 v3, s23, v1           ; channel
    s_lshl_b32 s24, s22, 16
    v_lshlrev_b32 v4, 1, v3
    v_add_u32 v4, s24, v4
    v_lshlrev_b32 v5, 12, v3        ; channel*4096
    s_lshl_b32 s25, s22, 7
    s_add_u32 s25, s25, {X0T}
    s_waitcnt lgkmcnt(0)
    """)
    a.srd(8, 4, WS_BYTES)
    a.srd(12, 6, 0x200000)
    for half in range(2):
        for e in range(32):
            ee = half * 32 + e
            if ee % 4 == 0:
                a(f"s_mov_b32 s26, {(ee // 4) * 4096}")
            a(f"buffer_load_ushort v{16+ee}, v4, s[12:15], s26 offen offset:{(ee % 4) * 1024}")
    for o in range(8):
        a(f"s_waitcnt vmcnt({min(63, 56 - 8 * o + o)})")
        for j in range(4):
            a(f"v_lshl_or_b32 v{88+4*o+j}, v{16+8*o+2*j+1}, 16, v{16+8*o+2*j}")
        a(f"buffer_store_dwordx4 v[{88+4*o}:{88+4*o+3}], v5, s[8:11], s25 offen offset:{16*o}")
    a("s_branch Lprep_fin")

    a(f"""
    Lprep_st:
    s_cmp_ge_u32 s2, {WG_W1}
    s_cbranch_scc1 Lprep_w1
    s_load_dwordx2 s[6:7], s[0:1], {KA_U}
    s_sub_u32 s20, s2, {WG_ST}
    s_lshl_b32 s20, s20, 2
    s_add_u32 s20, s20, s3          ; wt
    s_lshl_b32 s20, s20, 3
    v_lshrrev_b32 v3, 3, v1
    v_add_u32 v3, s20, v3           ; row
    v_and_b32 v4, 7, v1             ; part
    v_lshlrev_b32 v5, 10, v3
    v_lshl_add_u32 v5, v4, 4, v5
    v_mov_b32 v6, 0x3f803f80
    v_mov_b32 v8, 0
    v_mov_b32 v9, 0
    s_waitcnt lgkmcnt(0)
    """)
    a.srd(8, 4, WS_BYTES)
    a.srd(12, 6, 0x200000)
    for j in range(8):
        a(f"buffer_load_dwordx4 v[{16+4*j}:{19+4*j}], v5, s[12:15], 0 offen offset:{128*j}")
    for j in range(8):
        a(f"s_waitcnt vmcnt({7-j})")
        for r in range(4):
            a(f"""
            v_dot2_f32_bf16 v8, v{16+4*j+r}, v6, v8
            v_dot2_f32_bf16 v9, v{16+4*j+r}, v{16+4*j+r}, v9
            """)
    a(f"""
    s_nop 3
    v_add_f32_dpp v8, v8, v8 quad_perm:[1,0,3,2] row_mask:0xf bank_mask:0xf
    v_add_f32_dpp v9, v9, v9 quad_perm:[1,0,3,2] row_mask:0xf bank_mask:0xf
    s_nop 1
    v_add_f32_dpp v8, v8, v8 quad_perm:[2,3,0,1] row_mask:0xf bank_mask:0xf
    v_add_f32_dpp v9, v9, v9 quad_perm:[2,3,0,1] row_mask:0xf bank_mask:0xf
    s_nop 1
    v_add_f32_dpp v8, v8, v8 row_half_mirror row_mask:0xf bank_mask:0xf
    v_add_f32_dpp v9, v9, v9 row_half_mirror row_mask:0xf bank_mask:0xf
    v_lshlrev_b32 v10, 3, v3
    s_mov_b32 s21, {STATS0}
    v_cmp_eq_u32 vcc, 0, v4
    s_and_saveexec_b64 s[28:29], vcc
    buffer_store_dwordx2 v[8:9], v10, s[8:11], s21 offen
    s_branch Lprep_fin
    """)

    a(f"""
    Lprep_w1:
    s_cmp_ge_u32 s2, {WG_W2}
    s_cbranch_scc1 Lprep_w2
    s_load_dwordx2 s[6:7], s[0:1], {KA_W1}
    s_sub_u32 s20, s2, {WG_W1}      ; ft
    v_and_b32 v3, 31, v1            ; f
    v_lshrrev_b32 v4, 5, v1         ; g
    v_mul_u32_u24 v5, 28672, v4
    s_lshl_b32 s21, s20, 6          ; ft*32*2
    s_mul_i32 s22, s3, {8*16*3584}
    s_add_u32 s21, s21, s22
    v_lshl_add_u32 v5, v3, 1, v5
    v_add_u32 v5, s21, v5
    v_lshlrev_b32 v6, 4, v1         ; lane*16
    s_lshl_b32 s23, s20, 15
    s_add_u32 s23, s23, {W1F}
    s_lshl_b32 s24, s3, 13          ; w*8*1024
    s_add_u32 s24, s24, s23
    v_mov_b32 v7, 0x3f803f80
    v_mov_b32 v8, 0
    s_waitcnt lgkmcnt(0)
    """)
    a.srd(8, 4, WS_BYTES)
    a.srd(12, 6, 512 * 1792 * 2)
    for ks in range(8):
        for e in range(8):
            a(f"""
            s_mov_b32 s26, {(16*ks+e)*3584}
            buffer_load_ushort v{16+8*ks+e}, v5, s[12:15], s26 offen
            """)
    for ks in range(8):
        a(f"s_waitcnt vmcnt({min(63, 56 - 8 * ks + ks)})")
        for j in range(4):
            a(f"v_lshl_or_b32 v{88+4*ks+j}, v{16+8*ks+2*j+1}, 16, v{16+8*ks+2*j}")
        a(f"s_add_u32 s25, s24, {(ks//4)*4096}")
        a(f"buffer_store_dwordx4 v[{88+4*ks}:{88+4*ks+3}], v6, s[8:11], s25 offen offset:{(ks%4)*1024}")
        for j in range(4):
            a(f"v_dot2_f32_bf16 v8, v{88+4*ks+j}, v7, v8")
    a(f"""
    s_nop 3
    v_lshlrev_b32 v9, 2, v0
    ds_write_b32 v9, v8
    s_waitcnt lgkmcnt(0)
    s_barrier
    s_cmp_lg_u32 s3, 0
    s_cbranch_scc1 Lprep_fin
    v_lshlrev_b32 v9, 2, v3
    """)
    for j in range(8):
        a(f"ds_read_b32 v{16+j}, v9 offset:{128*j}")
    a(f"""
    s_waitcnt lgkmcnt(0)
    v_add_f32 v16, v16, v17
    v_add_f32 v18, v18, v19
    v_add_f32 v20, v20, v21
    v_add_f32 v22, v22, v23
    v_add_f32 v16, v16, v18
    v_add_f32 v20, v20, v22
    v_add_f32 v16, v16, v20          ; colsum
    s_lshl_b32 s25, s20, 7
    s_add_u32 s25, s25, {CSUM}
    v_cmp_gt_u32 vcc, 32, v1
    s_and_saveexec_b64 s[28:29], vcc
    buffer_store_dword v16, v9, s[8:11], s25 offen
    s_branch Lprep_fin
    """)

    a(f"""
    Lprep_w2:
    s_cmp_ge_u32 s2, {WG_Z}
    s_cbranch_scc1 Lprep_z
    s_load_dwordx2 s[6:7], s[0:1], {KA_W2}
    s_sub_u32 s20, s2, {WG_W2}
    s_lshl_b32 s20, s20, 2
    s_add_u32 s20, s20, s3          ; wt 0..223
    s_mul_i32 s21, s20, 4682
    s_lshr_b32 s21, s21, 16
    s_mul_i32 s22, s21, 14
    s_sub_u32 s22, s20, s22         ; wt%14
    v_and_b32 v3, 31, v1            ; c
    v_lshrrev_b32 v4, 5, v1         ; g
    v_lshlrev_b32 v5, 12, v4        ; g*4096
    v_lshl_add_u32 v5, v3, 1, v5
    s_lshl_b32 s23, s21, 6
    s_lshl_b32 s24, s22, 17         ; ks0*16384 = (wt%14)*8*16384
    s_add_u32 s23, s23, s24
    v_add_u32 v5, s23, v5
    v_lshlrev_b32 v6, 4, v1
    s_lshl_b32 s24, s20, 13
    s_add_u32 s24, s24, {W2F}
    s_waitcnt lgkmcnt(0)
    """)
    a.srd(8, 4, WS_BYTES)
    a.srd(12, 6, 512 * 1792 * 2)
    for i in range(8):
        for e in range(8):
            if e % 4 == 0:
                a(f"s_mov_b32 s26, {(16*i+8*(e//4))*1024}")
            a(f"buffer_load_ushort v{16+8*i+e}, v5, s[12:15], s26 offen offset:{(e%4)*1024}")
    for i in range(8):
        a(f"s_waitcnt vmcnt({min(63, 56 - 8 * i + i)})")
        for j in range(4):
            a(f"v_lshl_or_b32 v{88+4*i+j}, v{16+8*i+2*j+1}, 16, v{16+8*i+2*j}")
        a(f"s_add_u32 s25, s24, {(i//4)*4096}")
        a(f"buffer_store_dwordx4 v[{88+4*i}:{88+4*i+3}], v6, s[8:11], s25 offen offset:{(i%4)*1024}")
    a("s_branch Lprep_fin")

    a(f"""
    Lprep_z:
    s_waitcnt lgkmcnt(0)
    s_cmp_ge_u32 s2, {WG_PF}
    s_cbranch_scc1 Lprep_pf
    """)
    a.srd(8, 4, WS_BYTES)
    a(f"""
    v_lshlrev_b32 v3, 4, v0
    v_mov_b32 v4, 0
    v_mov_b32 v5, 0
    v_mov_b32 v6, 0
    v_mov_b32 v7, 0
    """)
    for j in range(4):
        a(f"""
        s_mov_b32 s20, {STATS2 + 4096*j}
        buffer_store_dwordx4 v[4:7], v3, s[8:11], s20 offen
        """)
    a(f"""
    s_branch Lprep_fin
    Lprep_pf:
    """)
    a.srd(8, 4, WS_BYTES)
    a(f"""
    s_getpc_b64 s[20:21]
    Lprep_pc:
    s_add_u32 s20, s20, conv1_kernel-Lprep_pc
    s_addc_u32 s21, s21, 0
    s_mov_b32 s22, Ltext_end-conv1_kernel-16
    v_lshlrev_b32 v3, 4, v0
    Lprep_pf_loop:
    v_cmp_ge_u32 vcc, s22, v3
    s_and_saveexec_b64 s[28:29], vcc
    s_cbranch_execz Lprep_fin
    global_load_dwordx4 v[4:7], v3, s[20:21]
    v_add_u32 v3, 4096, v3
    s_branch Lprep_pf_loop
    """)
    a("Lprep_fin:")
    if stamps:
        stamp_end(a, idx, 8, vtmp=120, tid_saved=127)
    a("""
    Lprep_end:
    s_endpgm
    """)
    return kd("prep_kernel", 128)
```

```python
from common import *

CS = 4416
KC = 0
UB = 8 * CS
US = 4864
UPAD = 576
XB = UB + 2 * US
RB = XB + 8192
CONV_LDS = RB + 16384


def gen_conv(a, stamps=False, idx=(1, 4)):
    for li, (name, xin, st, xout) in enumerate([("conv1_kernel", X0T, STATS0, X1T), ("conv2_kernel", X2T, STATS2, X3T)]):
        a.head(name)
        if stamps:
            stamp_start(a)
            a(f"s_mov_b32 s87, {STAMPS + idx[li] * 0x10000:#x}")
        a(f"""
        s_mov_b32 s32, {xin:#x}
        s_mov_b32 s33, {st:#x}
        s_mov_b32 s34, {xout:#x}
        s_branch Lconv_body
        """)
    a(".p2align 8")
    a("Lconv_body:")
    mk = Marks(a, stamps)
    a(f"""
    s_cmp_ge_u32 s2, 256
    s_cbranch_scc1 Lconv_end
    s_load_dwordx2 s[4:5], s[0:1], {KA_WS}
    s_load_dwordx2 s[6:7], s[0:1], {KA_DSKIP}
    v_mov_b32 v255, v0
    v_and_b32 v1, 63, v0            ; lane
    v_lshrrev_b32 v2, 6, v0         ; wave
    v_lshlrev_b32 v3, 4, v0         ; t*16
    v_readfirstlane_b32 s3, v2
    v_lshlrev_b32 v4, 6, v0         ; t*64
    s_lshl_b32 s12, s2, 13          ; cp*2*4096
    s_add_u32 s13, s12, s32
    s_add_u32 s14, s13, 4096
    s_lshl_b32 s15, s2, 2
    s_waitcnt lgkmcnt(0)
    s_load_dword s16, s[6:7], s15
    """)
    mk()
    a.srd(8, 4, WS_BYTES)
    a(f"""
    buffer_load_dwordx4 v[16:19], v4, s[8:11], s33 offen
    buffer_load_dwordx4 v[20:23], v4, s[8:11], s33 offen offset:16
    buffer_load_dwordx4 v[24:27], v4, s[8:11], s33 offen offset:32
    buffer_load_dwordx4 v[28:31], v4, s[8:11], s33 offen offset:48
    buffer_load_dwordx4 v[8:11], v3, s[8:11], s13 offen
    buffer_load_dwordx4 v[12:15], v3, s[8:11], s14 offen
    """)
    a(f"""
    s_lshr_b32 s17, s3, 1
    s_and_b32 s18, s3, 1            ; hw
    s_lshl_b32 s19, s2, 1
    s_add_u32 s19, s19, s17
    s_mul_i32 s20, s19, {KSTRIDE}
    s_add_u32 s20, s20, {KBUF + 16 + 104}
    s_lshl_b32 s21, s18, 2
    s_sub_u32 s20, s20, s21
    s_mul_i32 s22, s3, {2*CS}
    s_add_u32 s22, s22, 112
    v_lshlrev_b32 v5, 4, v1         ; lane*16
    """)
    mk()
    for c in range(2):
        if c == 1:
            a(f"""
            s_sub_u32 s20, s20, 2
            s_add_u32 s22, s22, {CS}
            """)
        a(f"""
        s_mov_b32 m0, s22
        s_nop 0
        buffer_load_dwordx4 v5, s[8:11], s20 offen lds
        buffer_load_dwordx4 v5, s[8:11], s20 offen offset:1024 lds
        buffer_load_dwordx4 v5, s[8:11], s20 offen offset:2048 lds
        buffer_load_dwordx4 v5, s[8:11], s20 offen offset:3072 lds
        """)
    mk()
    a(f"""
    s_and_b32 s40, s2, 1
    s_mul_i32 s40, s40, {28*32*1024}
    s_lshr_b32 s41, s2, 3
    s_mul_i32 s41, s41, {28*1024}
    s_add_u32 s40, s40, s41
    s_mul_i32 s41, s3, {7*1024}
    s_add_u32 s40, s40, s41
    s_add_u32 s40, s40, {W1F}
    s_add_u32 s41, s40, 4096
    """)
    PFQ = [f"buffer_load_dwordx4 v[{44+4*(i%4)}:{47+4*(i%4)}], v5, s[8:11], s{40 + i//4} offen offset:{1024*(i%4)}" for i in range(7)]
    a(f"""
    v_mov_b32 v32, 0
    v_mov_b32 v33, 0
    v_mov_b32 v34, 0
    v_mov_b32 v35, 0
    v_cmp_gt_u32 vcc, 36, v0
    s_and_saveexec_b64 s[26:27], vcc
    ds_write_b128 v3, v[32:35] offset:{UB}
    ds_write_b128 v3, v[32:35] offset:{UB+US}
    v_cmp_gt_u32 vcc, 8, v0
    s_and_b64 exec, exec, vcc
    v_mul_u32_u24 v36, {CS}, v0
    ds_write_b64 v36, v[32:33] offset:4208
    ds_write_b64 v36, v[32:33] offset:4216
    ds_write_b64 v36, v[32:33] offset:4224
    s_mov_b64 exec, -1
    """)
    a(f"""
    v_and_b32 v36, 15, v1
    v_lshrrev_b32 v37, 4, v1
    s_mul_i32 s25, s17, {US}
    s_add_u32 s25, s25, {UB + 160}
    s_lshl_b32 s26, s18, 6
    s_sub_u32 s25, s25, s26
    v_lshlrev_b32 v38, 5, v36
    v_lshl_add_u32 v38, v37, 4, v38
    v_add_u32 v38, s25, v38
    v_and_b32 v40, 3, v36
    v_lshrrev_b32 v41, 2, v36
    v_mul_u32_u24 v39, {CS}, v40
    v_lshl_add_u32 v39, v37, 4, v39
    v_lshlrev_b32 v41, 3, v41
    v_sub_u32 v39, v39, v41
    s_mul_i32 s25, s17, {4*CS}
    s_add_u32 s25, s25, 200
    s_sub_u32 s25, s25, s26
    v_add_u32 v39, s25, v39
    v_lshlrev_b32 v42, 5, v36
    v_lshl_add_u32 v42, v37, 3, v42
    s_lshl_b32 s25, s3, 12
    s_add_u32 s25, s25, {RB}
    v_add_u32 v43, s25, v5
    s_xor_b32 s26, s3, 1
    s_lshl_b32 s26, s26, 12
    s_add_u32 s26, s26, {RB}
    v_add_u32 v252, s26, v5
    s_mul_i32 s27, s17, {US}
    s_add_u32 s27, s27, {UB + UPAD}
    v_add_u32 v253, s27, v42
    s_lshl_b32 s27, s17, 12
    s_add_u32 s27, s27, {XB}
    v_add_u32 v254, s27, v42
    v_lshrrev_b32 v40, 1, v37
    v_and_b32 v41, 1, v37
    v_lshlrev_b32 v6, 5, v36
    v_lshl_add_u32 v6, v40, 4, v6
    v_lshl_add_u32 v6, v41, 9, v6
    s_lshl_b32 s35, s19, 12
    s_add_u32 s35, s35, s34
    """)
    a(f"""
    s_mov_b32 s28, {fhex(1.0/512)}
    s_mov_b32 s29, {fhex(1.0/512)}
    s_mov_b32 s36, {fhex(1e-5)}
    s_mov_b32 s37, {fhex(1e-5)}
    """)
    mk()
    a("s_waitcnt vmcnt(10)")
    mk()
    for p in range(4):
        sa, sb = 16 + 4 * p, 18 + 4 * p
        a(f"""
        v_pk_mul_f32 v[{sa}:{sa+1}], v[{sa}:{sa+1}], s[28:29]
        v_pk_mul_f32 v[{sb}:{sb+1}], v[{sb}:{sb+1}], s[28:29]
        """)
    for p in range(4):
        sa, sb = 16 + 4 * p, 18 + 4 * p
        a(f"""
        v_fma_f32 v{sa+1}, -v{sa}, v{sa}, v{sa+1}
        v_fma_f32 v{sb+1}, -v{sb}, v{sb}, v{sb+1}
        v_cvt_pk_bf16_f32 v{60+p}, v{sa}, v{sb}
        v_max_f32 v{sa+1}, 0, v{sa+1}
        v_max_f32 v{sb+1}, 0, v{sb+1}
        """)
    for p in range(4):
        sa, sb = 16 + 4 * p, 18 + 4 * p
        a(f"""
        v_cvt_pk_bf16_f32 v{sa}, v{sa+1}, v{sb+1}
        v_lshlrev_b32 v{44+2*p}, 16, v{60+p}
        v_and_b32 v{45+2*p}, 0xffff0000, v{60+p}
        v_lshlrev_b32 v{sb}, 16, v{sa}
        v_and_b32 v{sb+1}, 0xffff0000, v{sa}
        v_pk_add_f32 v[{sb}:{sb+1}], v[{sb}:{sb+1}], s[36:37]
        v_cvt_pk_bf16_f32 v{sa}, v{sb}, v{sb+1}
        v_lshlrev_b32 v{sb}, 16, v{sa}
        v_and_b32 v{sb+1}, 0xffff0000, v{sa}
        v_sqrt_f32 v{sb}, v{sb}
        v_sqrt_f32 v{sb+1}, v{sb+1}
        """)
    for p in range(4):
        sa, sb = 16 + 4 * p, 18 + 4 * p
        a(f"""
        v_cvt_pk_bf16_f32 v{sa}, v{sb}, v{sb+1}
        v_lshlrev_b32 v{sb}, 16, v{sa}
        v_and_b32 v{sb+1}, 0xffff0000, v{sa}
        v_rcp_f32 v{52+2*p}, v{sb}
        v_rcp_f32 v{53+2*p}, v{sb+1}
        """)
    a("s_waitcnt vmcnt(8)")
    a(f"""
    ds_write_b128 v3, v[8:11] offset:{XB}
    ds_write_b128 v3, v[12:15] offset:{XB+4096}
    """)
    for ch in range(2):
        for p in range(4):
            x = 8 + 4 * ch + p
            t = 16 + 2 * p
            a(f"""
            v_lshlrev_b32 v{t}, 16, v{x}
            v_and_b32 v{t+1}, 0xffff0000, v{x}
            v_pk_add_f32 v[{t}:{t+1}], v[{t}:{t+1}], v[{44+2*p}:{45+2*p}] neg_lo:[0,1] neg_hi:[0,1]
            v_cvt_pk_bf16_f32 v{60+p}, v{t}, v{t+1}
            """)
        for p in range(4):
            u = 64 + 4 * ch + p
            t = 16 + 2 * p
            a(f"""
            v_lshlrev_b32 v{t}, 16, v{60+p}
            v_and_b32 v{t+1}, 0xffff0000, v{60+p}
            v_pk_mul_f32 v[{t}:{t+1}], v[{t}:{t+1}], v[{52+2*p}:{53+2*p}]
            v_cvt_pk_bf16_f32 v{u}, v{t}, v{t+1}
            """)
        a(f"ds_write_b128 v3, v[{64+4*ch}:{67+4*ch}] offset:{UB+ch*US+UPAD}")
    ACC = 64
    G0 = 96
    FB = 228
    NFB = 6
    mk()
    a("""
    s_waitcnt vmcnt(0) lgkmcnt(0)
    s_barrier
    """)
    mk()
    a(f"""
    s_lshl_b32 s30, s16, 16
    s_and_b32 s31, s16, 0xffff0000
    s_cmp_eq_u32 s17, 0
    s_cselect_b32 s30, s30, s31
    s_mov_b32 s31, s30
    """)
    ops = []
    torder = [0, 1, 2, 3]
    lo, hi = 4, 31
    while lo <= hi:
        torder.append(lo); lo += 1
        if lo <= hi:
            torder.append(hi); hi -= 1
    assert sorted(torder) == list(range(32))

    def issue_G(j):
        a(f"ds_read_b128 v[{G0+4*j}:{G0+4*j+3}], v38 offset:{128*j}")
        ops.append(("G", j))

    def issue_F(pos):
        t = torder[pos]
        b = FB + 4 * (pos % NFB)
        a(f"ds_read_b64 v[{b}:{b+1}], v39 offset:{3968-128*t}")
        a(f"ds_read_b64 v[{b+2}:{b+3}], v39 offset:{3968-128*t+8}")
        ops.append(("F", pos)); ops.append(("F", pos))

    done_upto = [0]

    def wait_for(tags):
        last = max(i for i, o in enumerate(ops) if o in tags)
        if last < done_upto[0]:
            return
        n = len(ops) - 1 - last
        assert n <= 15
        a(f"s_waitcnt lgkmcnt({n})")
        done_upto[0] = last + 1

    gorder = [[3 + 4 * c for c in range(8)], [2 + 4 * c for c in range(8)], [1 + 4 * c for c in range(8)],
              [0 + 4 * c for c in range(8)]]
    issue_F(0)
    for j in gorder[0]:
        issue_G(j)
    issue_F(1)
    for q in PFQ:
        a(q)
    nextF = 2
    FDIST = 4
    for pos in range(32):
        t = torder[pos]
        cmin = t >> 2
        todo = []
        if pos + 1 < len(gorder):
            todo += [("G", j) for j in gorder[pos + 1]]
        while nextF <= 31 and nextF <= pos + (2 if pos < 3 else FDIST):
            todo.append(("F", nextF)); nextF += 1
        b = FB + 4 * (pos % NFB)
        cs = list(range(cmin, 8))
        for k, c in enumerate(cs):
            j = 3 - t + 4 * c
            wait_for({("F", pos), ("G", j)})
            srcc = "0" if pos == 0 else f"v[{ACC+4*c}:{ACC+4*c+3}]"
            a(f"v_mfma_f32_16x16x32_bf16 v[{ACC+4*c}:{ACC+4*c+3}], v[{b}:{b+3}], v[{G0+4*j}:{G0+4*j+3}], {srcc}")
            nper = -(-len(todo) // max(1, len(cs) - k))
            for _ in range(nper):
                if todo:
                    kind, x = todo.pop(0)
                    need = 2 if kind == "F" else 1
                    if len(ops) - done_upto[0] + need > 15:
                        n = 15 - need
                        a(f"s_waitcnt lgkmcnt({n})")
                        done_upto[0] = len(ops) - n
                    if kind == "F":
                        issue_F(x)
                    else:
                        issue_G(x)
        assert not todo
    mk()
    a(f"""
    s_cmp_eq_u32 s18, 0
    s_cbranch_scc0 Lconv_ep1
    """)
    for role in range(2):
        if role == 1:
            a("Lconv_ep1:")
        keep = [0, 1, 2, 3] if role == 0 else [4, 5, 6, 7]
        give = [4, 5, 6, 7] if role == 0 else [0, 1, 2, 3]
        U, X, P, T, XF, O = 8, 16, 96, 112, 128, 144
        for k, c in enumerate(keep):
            a(f"ds_read_b64 v[{U+2*k}:{U+2*k+1}], v253 offset:{512*c}")
        for k, c in enumerate(keep):
            a(f"ds_read_b64 v[{X+2*k}:{X+2*k+1}], v254 offset:{512*c}")
        for k, c in enumerate(give):
            a(f"ds_write_b128 v43, v[{ACC+4*c}:{ACC+4*c+3}] offset:{1024*k}")
        a("s_waitcnt lgkmcnt(8)")
        for i in range(8):
            t = T + 2 * i
            a(f"""
            v_lshlrev_b32 v{t}, 16, v{U+i}
            v_and_b32 v{t+1}, 0xffff0000, v{U+i}
            v_pk_mul_f32 v[{t}:{t+1}], v[{t}:{t+1}], s[30:31]
            v_cvt_pk_bf16_f32 v{U+i}, v{t}, v{t+1}
            """)
        a("""
        s_waitcnt lgkmcnt(0)
        s_barrier
        """)
        for k in range(4):
            a(f"ds_read_b128 v[{P+4*k}:{P+4*k+3}], v252 offset:{1024*k}")
        for i in range(8):
            a(f"""
            v_lshlrev_b32 v{T+2*i}, 16, v{U+i}
            v_and_b32 v{T+2*i+1}, 0xffff0000, v{U+i}
            v_lshlrev_b32 v{XF+2*i}, 16, v{X+i}
            v_and_b32 v{XF+2*i+1}, 0xffff0000, v{X+i}
            """)
        for kp in range(2):
            a(f"s_waitcnt lgkmcnt({2-2*kp})")
            idx = [(2 * kp + kk, h) for kk in range(2) for h in range(2)]
            ys = [ACC + 4 * keep[k] + 2 * h for k, h in idx]
            ii = [2 * k + h for k, h in idx]
            for y, i in zip(ys, ii):
                a(f"v_pk_add_f32 v[{y}:{y+1}], v[{y}:{y+1}], v[{P+2*i}:{P+2*i+1}]")
            for n, y in enumerate(ys):
                a(f"v_cvt_pk_bf16_f32 v{24+n}, v{y}, v{y+1}")
            for n, y in enumerate(ys):
                a(f"""
                v_lshlrev_b32 v{y}, 16, v{24+n}
                v_and_b32 v{y+1}, 0xffff0000, v{24+n}
                """)
            for y, i in zip(ys, ii):
                a(f"v_pk_add_f32 v[{y}:{y+1}], v[{y}:{y+1}], v[{T+2*i}:{T+2*i+1}]")
            for n, y in enumerate(ys):
                a(f"v_cvt_pk_bf16_f32 v{24+n}, v{y}, v{y+1}")
            for n, y in enumerate(ys):
                a(f"""
                v_lshlrev_b32 v{y}, 16, v{24+n}
                v_and_b32 v{y+1}, 0xffff0000, v{24+n}
                """)
            for y, i in zip(ys, ii):
                a(f"v_pk_add_f32 v[{y}:{y+1}], v[{y}:{y+1}], v[{XF+2*i}:{XF+2*i+1}]")
            o = O + 4 * kp
            for n, y in enumerate(ys):
                a(f"v_cvt_pk_bf16_f32 v{o+n}, v{y}, v{y+1}")
            a(f"""
            s_nop 1
            v_permlane16_swap_b32 v{o}, v{o+2}
            v_permlane16_swap_b32 v{o+1}, v{o+3}
            buffer_store_dwordx4 v[{o}:{o+3}], v6, s[8:11], s35 offen offset:{512*keep[2*kp]} sc1
            """)
        if role == 0:
            a("s_branch Lconv_fin")
    a("Lconv_fin:")
    mk()
    if stamps:
        a("v_lshrrev_b32 v250, 6, v255")
        mk.dump(8, None, 250)
        a(f"""
        s_waitcnt vmcnt(0) lgkmcnt(0)
        s_memrealtime s[92:93]
        s_waitcnt lgkmcnt(0)
        v_lshrrev_b32 v2, 6, v255
        v_lshlrev_b32 v2, 4, v2
        v_and_b32 v3, 63, v255
        v_mov_b32 v0, s90
        v_mov_b32 v1, s92
        s_lshl_b32 s94, s2, 6
        s_add_u32 s94, s94, s87
        v_cmp_eq_u32 vcc, 0, v3
        s_and_saveexec_b64 s[88:89], vcc
        buffer_store_dwordx2 v[0:1], v2, s[8:11], s94 offen
        """)
    a("""
    Lconv_end:
    s_endpgm
    """)
    return kd("conv1_kernel", 256) + kd("conv2_kernel", 256)
```

```python
from common import *
import math

import os
STFLAG = os.environ.get('STFLAG', 'sc1')
NMAIN = 224
NWG = 256
WLA = 8
DLA = 6
BLOCK = 512
SB = 131072
LDS = SB + 8192

C1 = -2.0 * math.sqrt(2.0 / math.pi) * 1.4426950408889634
C2 = C1 * 0.044715


def finalize2(a, j0, T, vaddr, R):
    for p in range(8):
        a(f"ds_read_b64 v[{T+2*p}:{T+2*p+1}], v{vaddr} offset:{2048*j0 + 256*p}")
    a("s_waitcnt lgkmcnt(0)")
    a(f"""
    v_add_f32 v{T}, v{T}, v{T+2}
    v_add_f32 v{T+1}, v{T+1}, v{T+3}
    v_add_f32 v{T+4}, v{T+4}, v{T+6}
    v_add_f32 v{T+5}, v{T+5}, v{T+7}
    v_add_f32 v{T+8}, v{T+8}, v{T+10}
    v_add_f32 v{T+9}, v{T+9}, v{T+11}
    v_add_f32 v{T+12}, v{T+12}, v{T+14}
    v_add_f32 v{T+13}, v{T+13}, v{T+15}
    v_add_f32 v{T}, v{T}, v{T+4}
    v_add_f32 v{T+1}, v{T+1}, v{T+5}
    v_add_f32 v{T+8}, v{T+8}, v{T+12}
    v_add_f32 v{T+9}, v{T+9}, v{T+13}
    v_add_f32 v{T}, v{T}, v{T+8}
    v_add_f32 v{T+1}, v{T+1}, v{T+9}
    v_mul_f32 v{T}, s28, v{T}                 ; mean
    v_mul_f32 v{T+1}, s28, v{T+1}
    v_fma_f32 v{T+1}, -v{T}, v{T}, v{T+1}
    v_max_f32 v{T+1}, 0, v{T+1}               ; var
    v_cvt_pk_bf16_f32 v{T+4}, v{T+1}, v{T+1}
    v_and_b32 v{T+4}, 0xffff0000, v{T+4}      ; v1
    v_add_f32 v{T+4}, s29, v{T+4}
    v_cvt_pk_bf16_f32 v{T+4}, v{T+4}, v{T+4}
    v_and_b32 v{T+4}, 0xffff0000, v{T+4}
    v_sqrt_f32 v{T+4}, v{T+4}
    s_nop 0
    v_cvt_pk_bf16_f32 v{T+4}, v{T+4}, v{T+4}
    v_and_b32 v{T+4}, 0xffff0000, v{T+4}      ; s1
    v_rcp_f32 v{T+7}, v{T+4}
    s_nop 0
    v_mul_f32 v{T+8}, v{T+1}, v{T+7}
    v_mul_f32 v{T+8}, v{T+8}, v{T+7}          ; var/s1^2
    v_cvt_pk_bf16_f32 v{T+8}, v{T+8}, v{T+8}
    v_and_b32 v{T+8}, 0xffff0000, v{T+8}
    v_add_f32 v{T+8}, s29, v{T+8}
    v_cvt_pk_bf16_f32 v{T+8}, v{T+8}, v{T+8}
    v_and_b32 v{T+8}, 0xffff0000, v{T+8}
    v_sqrt_f32 v{T+8}, v{T+8}
    s_nop 0
    v_cvt_pk_bf16_f32 v{T+8}, v{T+8}, v{T+8}
    v_and_b32 v{T+8}, 0xffff0000, v{T+8}      ; s2
    v_rcp_f32 v{T+8}, v{T+8}
    s_nop 0
    v_mul_f32 v{R}, v{T+7}, v{T+8}            ; r
    v_mul_f32 v{R+1}, v{R}, v{T}              ; r*mean
    v_mov_b32 v{R+2}, v{R}
    v_mov_b32 v{R+3}, v{R+1}
    s_nop 1
    v_permlane32_swap_b32 v{R}, v{R+2}
    v_permlane32_swap_b32 v{R+1}, v{R+3}
    """)


def gelu_tile_pk(a, A, R, B1, CS, T, O, SC):
    for i in range(0, 16, 4):
        xs = [A + i, A + i + 2]
        ts = [T, T + 2]
        us = [T + 4, T + 6]
        for k in range(2):
            a(f"v_pk_fma_f32 v[{us[k]}:{us[k]+1}], v[{R}:{R+1}], v[{CS+i+2*k}:{CS+i+2*k+1}], v[{B1+i+2*k}:{B1+i+2*k+1}] op_sel:[1,0,0] op_sel_hi:[1,1,1] neg_lo:[1,0,0] neg_hi:[1,0,0]")
        for k in range(2):
            a(f"v_pk_fma_f32 v[{xs[k]}:{xs[k]+1}], v[{xs[k]}:{xs[k]+1}], v[{R}:{R+1}], v[{us[k]}:{us[k]+1}] op_sel:[0,0,0] op_sel_hi:[1,0,1]")
        for k in range(2):
            a(f"v_pk_mul_f32 v[{ts[k]}:{ts[k]+1}], v[{xs[k]}:{xs[k]+1}], v[{xs[k]}:{xs[k]+1}]")
        for k in range(2):
            a(f"v_pk_fma_f32 v[{ts[k]}:{ts[k]+1}], v[{ts[k]}:{ts[k]+1}], s[{SC}:{SC+1}], v[26:27]")
        for k in range(2):
            a(f"v_pk_mul_f32 v[{ts[k]}:{ts[k]+1}], v[{ts[k]}:{ts[k]+1}], v[{xs[k]}:{xs[k]+1}]")
        for k in range(4):
            a(f"v_exp_f32 v{T+k}, v{T+k}")
        a("s_nop 0")
        for k in range(2):
            a(f"v_pk_add_f32 v[{ts[k]}:{ts[k]+1}], v[{ts[k]}:{ts[k]+1}], 1.0 op_sel_hi:[1,0]")
        for k in range(4):
            a(f"v_rcp_f32 v{T+k}, v{T+k}")
        a("s_nop 0")
        for k in range(2):
            a(f"v_pk_mul_f32 v[{xs[k]}:{xs[k]+1}], v[{xs[k]}:{xs[k]+1}], v[{ts[k]}:{ts[k]+1}]")
        a(f"v_cvt_pk_bf16_f32 v{O+i//2}, v{A+i}, v{A+i+1}")
        a(f"v_cvt_pk_bf16_f32 v{O+i//2+1}, v{A+i+2}, v{A+i+3}")


def gelu_tile(a, A, r, rm, B1, CS, T, O, vc1):
    for i in range(0, 16, 4):
        x = [A + i + k for k in range(4)]
        t = [T + k for k in range(4)]
        u = [T + 4 + k for k in range(4)]
        for k in range(4):
            a(f"v_fma_f32 v{u[k]}, -v{rm}, v{CS+i+k}, v{B1+i+k}")
        for k in range(4):
            a(f"v_fma_f32 v{x[k]}, v{x[k]}, v{r}, v{u[k]}")
        for k in range(4):
            a(f"v_mul_f32 v{t[k]}, v{x[k]}, v{x[k]}")
        for k in range(4):
            a(f"v_fma_f32 v{t[k]}, v{t[k]}, s31, v{vc1}")
        for k in range(4):
            a(f"v_mul_f32 v{t[k]}, v{t[k]}, v{x[k]}")
        for k in range(4):
            a(f"v_exp_f32 v{t[k]}, v{t[k]}")
        for k in range(4):
            a(f"v_add_f32 v{t[k]}, 1.0, v{t[k]}")
        for k in range(4):
            a(f"v_rcp_f32 v{t[k]}, v{t[k]}")
        for k in range(4):
            a(f"v_mul_f32 v{x[k]}, v{x[k]}, v{t[k]}")
        a(f"v_cvt_pk_bf16_f32 v{O+i//2}, v{x[0]}, v{x[1]}")
        a(f"v_cvt_pk_bf16_f32 v{O+i//2+1}, v{x[2]}, v{x[3]}")


def load_b1cs(a, RAW, CS):
    for q in range(4):
        a(f"buffer_load_dwordx2 v[{RAW+2*q}:{RAW+2*q+1}], v6, s[20:23], s26 offen offset:{16*q}")
    for q in range(4):
        a(f"buffer_load_dwordx4 v[{CS+4*q}:{CS+4*q+3}], v7, s[8:11], s27 offen offset:{32*q}")


def unpack_b1(a, RAW, B1):
    for q in range(4):
        for h in range(2):
            a(f"""
            v_lshlrev_b32 v{B1+4*q+2*h}, 16, v{RAW+2*q+h}
            v_and_b32 v{B1+4*q+2*h+1}, 0xffff0000, v{RAW+2*q+h}
            """)


def store_tile(a, j, O):
    a(f"""
    s_add_u32 s35, s34, {j*112*1024}
    buffer_store_dwordx4 v[{O}:{O+3}], v3, s[8:11], s35 offen {STFLAG}
    buffer_store_dwordx4 v[{O+4}:{O+7}], v3, s[8:11], s35 offen offset:1024 {STFLAG}
    """)


def gen(a, stamps=False, idx=(2, 5)):
    for li, (name, xin, hout) in enumerate([("gemm1a_kernel", X1T, HF1), ("gemm1b_kernel", X3T, HF2)]):
        a.head(name)
        if stamps:
            stamp_start(a)
            a(f"s_mov_b32 s87, {STAMPS + idx[li] * 0x10000:#x}")
        a(f"""
        s_mov_b32 s32, {xin:#x}
        s_mov_b32 s33, {hout:#x}
        s_branch Lg1_body
        """)
    a(".p2align 8")
    a("Lg1_body:")
    a(f"""
    s_cmp_ge_u32 s2, {NWG}
    s_cbranch_scc1 Lg1_end
    s_load_dwordx2 s[4:5], s[0:1], {KA_WS}
    s_load_dwordx2 s[6:7], s[0:1], {KA_B1}
    v_and_b32 v1, 63, v0            ; lane
    v_lshrrev_b32 v2, 6, v0         ; wave
    v_lshlrev_b32 v3, 4, v1         ; lane*16
    v_readfirstlane_b32 s36, v2
    s_cmp_ge_u32 s2, {NMAIN}
    s_cbranch_scc1 Lg1_pref
    s_and_b32 s12, s2, 7
    s_lshr_b32 s13, s2, 3
    s_lshr_b32 s14, s12, 1
    s_lshl_b32 s14, s14, 2
    s_and_b32 s15, s13, 3
    s_add_u32 s14, s14, s15         ; tg
    s_and_b32 s15, s12, 1
    s_mul_i32 s15, s15, 7
    s_lshr_b32 s16, s13, 2
    s_add_u32 s15, s15, s16         ; fg
    s_mov_b32 s39, s16
    s_and_b32 s3, s36, 3
    s_lshl_b32 s16, s15, 2
    s_add_u32 s16, s16, s3          ; ft
    v_lshrrev_b32 v5, 5, v1         ; h / g
    v_lshlrev_b32 v6, 3, v5         ; h*8
    v_lshlrev_b32 v7, 4, v5         ; h*16
    s_lshl_b32 s26, s16, 6
    s_lshl_b32 s27, s16, 7
    s_add_u32 s27, s27, {CSUM}
    v_bfe_u32 v10, v1, 4, 1         ; th
    s_lshl_b32 s37, s3, 12
    v_add_u32 v24, s37, v3
    v_and_b32 v25, 31, v1
    v_lshlrev_b32 v25, 3, v25
    v_lshl_add_u32 v25, v5, 11, v25
    v_add_u32 v25, {SB}, v25
    s_mul_i32 s34, s14, {4*112*1024}
    s_lshl_b32 s35, s16, 11
    s_add_u32 s34, s34, s35
    s_add_u32 s34, s34, s33
    s_mov_b32 s28, {fhex(1.0/512)}
    s_mov_b32 s29, {fhex(1e-5)}
    s_mov_b32 s30, {fhex(C2)}
    s_mov_b32 s31, {fhex(C2)}
    v_mov_b32 v26, {fhex(C1)}
    v_mov_b32 v27, {fhex(C1)}
    s_waitcnt lgkmcnt(0)
    """)
    a.srd(8, 4, WS_BYTES)
    a.srd(20, 6, 1792 * 2)
    a("""
    s_cmp_ge_u32 s36, 4
    s_cbranch_scc1 Lg1_helper
    """)
    mk = Marks(a, stamps)
    ACC = 64
    XB = 40
    NXB = 6
    TB = 12
    ST = 32
    a(f"""
    s_lshl_b32 s17, s16, 15
    s_add_u32 s17, s17, {W1F}
    """)
    for p in range(4):
        a(f"""
        s_add_u32 s44, s3, {p}
        s_and_b32 s44, s44, 3
        s_lshl_b32 s{48+p}, s44, 11
        s_lshl_b32 s44, s44, 10
        s_add_u32 s{40+p}, s17, s44
        """)
    nW = [0]

    def wload():
        n = nW[0]
        c, p = n // 4, n % 4
        if p == 0:
            a(f"""
            s_add_u32 s45, s39, {c}
            s_and_b32 s45, s45, 7
            s_lshl_b32 s45, s45, 12
            """)
        a(f"s_add_u32 s25, s{40+p}, s45")
        a(f"buffer_load_dwordx4 a[{4*n}:{4*n+3}], v3, s[8:11], s25 offen")
        nW[0] += 1

    for _ in range(WLA):
        wload()
    a(f"""
    v_bfe_u32 v8, v1, 2, 2          ; r
    v_and_b32 v9, 3, v1             ; c
    v_lshlrev_b32 v11, 10, v5       ; g*1024
    v_lshl_add_u32 v11, v8, 7, v11  ; + r*128
    v_lshl_add_u32 v11, v10, 5, v11 ; + 32 th
    v_lshl_add_u32 v11, v9, 3, v11  ; + 8c
    v_lshrrev_b32 v8, 1, v8         ; r>>1
    v_lshl_add_u32 v20, v8, 6, v11
    v_xor_b32 v8, 1, v8
    v_lshl_add_u32 v21, v8, 6, v11
    v_mov_b32 v29, 0x3f803f80
    v_lshlrev_b32 v30, 3, v1
    s_lshl_b32 s38, s3, 9
    s_add_u32 s38, s38, {SB}
    v_add_u32 v30, s38, v30
    """)
    for p in range(4):
        a(f"""
        v_add_u32 v{TB+2*p}, s{48+p}, v20
        v_add_u32 v{TB+2*p+1}, s{48+p}, v21
        """)
    for r in range(64):
        a(f"v_mov_b32 v{ACC+r}, 0")
    for r in range(8):
        a(f"v_mov_b32 v{ST+r}, 0")
    mk()

    lds = []
    done = [0]

    def rd(it):
        i, n, j = it
        c, p = n // 4, n % 4
        b = XB + 4 * (i % NXB)
        a(f"ds_read_b64_tr_b16 v[{b}:{b+1}], v{TB+2*p+(j&1)} offset:{c*8192}")
        a(f"ds_read_b64_tr_b16 v[{b+2}:{b+3}], v{TB+2*p+(j&1)} offset:{c*8192+512}")
        lds.append(("X", i)); lds.append(("X", i))

    def wait(tag):
        last = max(i for i, t in enumerate(lds) if t == tag)
        if last < done[0]:
            return
        n = len(lds) - 1 - last
        assert n <= 15, n
        a(f"s_waitcnt lgkmcnt({n})")
        done[0] = last + 1

    def mfma(it):
        i, n, j = it
        b = XB + 4 * (i % NXB)
        wait(("X", i))
        a(f"v_mfma_f32_32x32x16_bf16 v[{ACC+16*j}:{ACC+16*j+15}], a[{4*n}:{4*n+3}], v[{b}:{b+3}], v[{ACC+16*j}:{ACC+16*j+15}]")
        if n % 4 == 0 and j % 2 == 1:
            b0 = XB + 4 * ((i - 1) % NXB)
            for r in range(4):
                a(f"""
                v_dot2_f32_bf16 v{ST+2*j-2}, v{b0+r}, v29, v{ST+2*j-2}
                v_dot2_f32_bf16 v{ST+2*j-1}, v{b0+r}, v{b0+r}, v{ST+2*j-1}
                v_dot2_f32_bf16 v{ST+2*j}, v{b+r}, v29, v{ST+2*j}
                v_dot2_f32_bf16 v{ST+2*j+1}, v{b+r}, v{b+r}, v{ST+2*j+1}
                """)

    PF = 4
    cnt = [0]

    def run_items(pairs, extra=None):
        items = []
        for n, j in pairs:
            items.append((cnt[0], n, j)); cnt[0] += 1
        for it in items[:PF]:
            rd(it)
        for k, it in enumerate(items):
            mfma(it)
            if k + PF < len(items):
                rd(items[k + PF])
            if extra:
                extra(k)

    for c in range(8):
        a("s_barrier")
        a(f"s_waitcnt vmcnt({nW[0] - (4*c+4)})")
        if c in (0, 4, 7):
            mk()

        def ex(k):
            if k % 2 == 1 and nW[0] < 32:
                wload()
        run_items([(n, j) for n in range(4 * c, 4 * c + 4) for j in range(2)], ex)
    for p in range(8):
        a(f"v_add_u32 v{TB+p}, 0x10000, v{TB+p}")
    a("s_barrier          ; X1")
    mk()

    dump = [("S", 0), ("S", 1)] + [(j, r) for j in range(2) for r in range(4)]

    def exB(k):
        if k >= 1 and dump:
            j, r = dump.pop(0)
            if j == "S":
                a(f"ds_write_b64 v30, v[{ST+2*r}:{ST+2*r+1}] offset:{2048*r}")
            else:
                a(f"ds_write_b128 v24, v[{ACC+16*j+4*r}:{ACC+16*j+4*r+3}] offset:{16384*j+1024*r}")
            lds.append(("W", j, r))
            if not dump:
                a("s_waitcnt lgkmcnt(0)")
                done[0] = len(lds)
                a("s_barrier          ; X2")
                mk()
                load_b1cs(a, ACC + 8, ACC + 16)
    run_items([(n, j) for n in range(0, 32) for j in (2, 3)], exB)
    mk()
    a("s_waitcnt vmcnt(0)")
    unpack_b1(a, ACC + 8, XB)
    for j in (2, 3):
        a(f"ds_write_b64 v30, v[{ST+2*j}:{ST+2*j+1}] offset:{2048*j}")
    for r in range(4):
        a(f"ds_write_b128 v24, v[{ACC+32+4*r}:{ACC+32+4*r+3}] offset:{32768+1024*r}")
    a("""
    s_waitcnt lgkmcnt(0)
    s_barrier          ; Z1
    """)
    mk()
    finalize2(a, 2, ACC + 32, 25, 12)
    gelu_tile_pk(a, ACC + 48, 14, XB, ACC + 16, 56, 32, 30)
    store_tile(a, 3, 32)
    mk()
    if stamps:
        a("v_mov_b32 v5, s36")
        mk.dump(8, None, 5)
    a("s_branch Lg1_fin")

    a("Lg1_helper:")
    B1, CS, RAW = 64, 80, 96
    AB = 104
    AB2 = 40
    a(f"""
    v_lshrrev_b32 v4, 3, v1
    v_and_b32 v8, 7, v1
    v_lshlrev_b32 v10, 2, v10
    v_xor_b32 v8, v8, v10
    v_lshlrev_b32 v4, 12, v4
    v_lshl_add_u32 v4, v8, 4, v4    ; vD
    s_lshl_b32 s18, s14, 8
    s_add_u32 s18, s18, s32
    s_lshl_b32 s19, s3, 15          ; w*32768 (octet w)
    s_add_u32 s18, s18, s19
    s_lshl_b32 s19, s3, 10
    """)
    vm = []
    dq = [(j, 0) for j in range(16)] + [(j, 1) for j in range(16)]

    def dma():
        j, hh = dq.pop(0)
        if j % 2 == 0:
            a(f"""
            s_add_u32 s45, s39, {j//2}
            s_and_b32 s45, s45, 7
            s_lshl_b32 s45, s45, 18
            s_add_u32 s45, s45, s18
            """)
        a(f"""
        s_add_u32 m0, s19, {hh*65536 + j*4096}
        s_add_u32 s24, s45, {(j%2)*131072 + hh*128}
        buffer_load_dwordx4 v4, s[8:11], s24 offen lds
        """)
        vm.append(("D", j, hh))

    def wait_vm(tag):
        last = vm.index(tag)
        a(f"s_waitcnt vmcnt({len(vm) - 1 - last})")

    for _ in range(DLA):
        dma()
    for c in range(8):
        wait_vm(("D", 2 * c + 1, 0))
        a("s_barrier")
        for _ in range(2 if c < 5 else 4):
            if dq:
                dma()
        if c == 7:
            load_b1cs(a, RAW, CS)
            vm.extend([("B",)] * 8)
    while dq:
        dma()
    wait_vm(("D", 5, 1))
    a("s_barrier          ; X1")
    a("s_waitcnt vmcnt(0)")
    unpack_b1(a, RAW, B1)
    a("s_barrier          ; X2")
    for r in range(4):
        a(f"ds_read_b128 v[{AB2+4*r}:{AB2+4*r+3}], v24 offset:{1024*r}")
    finalize2(a, 0, AB, 25, 12)
    for r in range(4):
        a(f"ds_read_b128 v[{AB+4*r}:{AB+4*r+3}], v24 offset:{16384+1024*r}")
    gelu_tile(a, AB2, 12, 13, B1, CS, 32, 120, 26)
    store_tile(a, 0, 120)
    a("s_waitcnt lgkmcnt(0)")
    gelu_tile(a, AB, 14, 15, B1, CS, 32, 96, 26)
    store_tile(a, 1, 96)
    a("s_barrier          ; Z1")
    for r in range(4):
        a(f"ds_read_b128 v[{AB2+4*r}:{AB2+4*r+3}], v24 offset:{32768+1024*r}")
    finalize2(a, 2, AB, 25, 12)
    gelu_tile_pk(a, AB2, 12, B1, CS, 32, 120, 30)
    store_tile(a, 2, 120)
    a("s_branch Lg1_fin")

    a(f"""
    Lg1_pref:
    s_waitcnt lgkmcnt(0)
    """)
    a.srd(8, 4, WS_BYTES)
    a(f"""
    s_sub_u32 s12, s2, {NMAIN}
    s_lshr_b32 s12, s12, 3          ; quarter 0..3
    s_mul_i32 s12, s12, {448*1024}
    s_mul_i32 s13, s36, {56*1024}
    s_add_u32 s12, s12, s13
    s_add_u32 s12, s12, {W2F}
    s_mov_b32 s3, 0
    s_mov_b32 s13, 0
    Lg1_pf_loop:
    """)
    for i in range(4):
        a(f"buffer_load_dwordx4 v[{8+4*i}:{11+4*i}], v3, s[8:11], s12 offen offset:{1024*i}")
    a(f"""
    s_add_u32 s12, s12, 4096
    s_add_u32 s13, s13, 1
    s_cmp_lt_u32 s13, 14
    s_cbranch_scc1 Lg1_pf_loop
    s_waitcnt vmcnt(0)
    """)

    a("Lg1_fin:")
    if stamps:
        a(f"""
        s_waitcnt vmcnt(0) lgkmcnt(0)
        s_memrealtime s[92:93]
        s_waitcnt lgkmcnt(0)
        s_lshl_b32 s95, s3, 4
        v_mov_b32 v2, s95
        v_mov_b32 v3, v1
        v_mov_b32 v0, s90
        v_mov_b32 v1, s92
        s_lshl_b32 s94, s2, 6
        s_add_u32 s94, s94, s87
        v_cmp_eq_u32 vcc, 0, v3
        s_and_saveexec_b64 s[88:89], vcc
        buffer_store_dwordx2 v[0:1], v2, s[8:11], s94 offen
        """)
    a("""
    Lg1_end:
    s_endpgm
    """)
    return kd("gemm1a_kernel", 256, accum=128) + kd("gemm1b_kernel", 256, accum=128)
```

```python
from common import *

LDS = 4 * 3 * 4096 + 8192
DEPTH = 6


def gen(a, stamps=False, idx=(3, 6)):
    for li, (name, hin, xin) in enumerate([("gemm2a_kernel", HF1, X1T), ("gemm2b_kernel", HF2, X3T)]):
        a.head(name)
        if stamps:
            stamp_start(a)
            a(f"s_mov_b32 s87, {STAMPS + idx[li] * 0x10000:#x}")
        a(f"""
        s_mov_b32 s32, {hin:#x}
        s_mov_b32 s33, {xin:#x}
        s_mov_b32 s36, {li}
        s_branch Lg2_body
        """)
    a(".p2align 8")
    a("Lg2_body:")
    mk = Marks(a, stamps)
    a(f"""
    s_cmp_ge_u32 s2, 256
    s_cbranch_scc1 Lg2_end
    s_load_dwordx2 s[4:5], s[0:1], {KA_WS}
    s_load_dwordx2 s[6:7], s[0:1], {KA_B2}
    s_load_dwordx2 s[40:41], s[0:1], {KA_OUT}
    v_and_b32 v1, 63, v0            ; lane
    v_lshrrev_b32 v2, 6, v0         ; wave
    v_lshlrev_b32 v3, 4, v1         ; lane*16
    v_readfirstlane_b32 s3, v2
    s_and_b32 s12, s2, 7
    s_lshr_b32 s13, s2, 3
    s_lshl_b32 s14, s12, 2
    s_and_b32 s15, s13, 3
    s_add_u32 s14, s14, s15         ; ty
    s_lshr_b32 s15, s13, 2          ; cx
    s_lshr_b32 s16, s3, 1           ; wa = w>>1
    s_and_b32 s17, s3, 1            ; wb = w&1
    s_mul_i32 s18, s3, {28*1024}
    s_lshl_b32 s19, s15, 1
    s_add_u32 s20, s19, s16
    s_xor_b32 s21, s20, 1
    s_mul_i32 s22, s20, {112*1024}
    s_mul_i32 s23, s21, {112*1024}
    s_add_u32 s22, s22, s18
    s_add_u32 s23, s23, s18
    s_add_u32 s22, s22, {W2F}
    s_add_u32 s23, s23, {W2F}
    s_lshl_b32 s19, s14, 1
    s_add_u32 s24, s19, s17
    s_xor_b32 s25, s24, 1
    s_mul_i32 s26, s24, {112*1024}
    s_mul_i32 s27, s25, {112*1024}
    s_add_u32 s26, s26, s18
    s_add_u32 s27, s27, s18
    s_add_u32 s26, s26, s32
    s_add_u32 s27, s27, s32
    v_add_u32 v4, s22, v3
    v_add_u32 v5, s23, v3
    v_add_u32 v6, s26, v3
    v_add_u32 v7, s27, v3
    s_waitcnt lgkmcnt(0)
    """)
    a.srd(8, 4, WS_BYTES)
    a.srd(28, 6, 1024)
    a.srd(44, 40, 0x200000)

    a(f"""
    s_mul_i32 s34, s15, 7
    s_lshr_b32 s34, s34, 1
    s_lshl_b32 s34, s34, 10
    """)

    def ld(i):
        slot = (i % DEPTH) * 16
        for q in range(4):
            a(f"buffer_load_dwordx4 a[{slot+4*q}:{slot+4*q+3}], v{4+q}, s[8:11], s34 offen")
        a(f"""
        s_add_u32 s34, s34, 1024
        s_cmp_eq_u32 s34, {28*1024}
        s_cselect_b32 s34, 0, s34
        """)

    XR = 4 * 3 * 4096
    a(f"""
    v_lshrrev_b32 v32, 5, v1        ; h
    v_and_b32 v33, 31, v1           ; tok
    v_lshlrev_b32 v34, 3, v32       ; h*8
    s_lshl_b32 s35, s20, 6
    v_lshrrev_b32 v35, 2, v1
    v_lshlrev_b32 v35, 12, v35
    v_and_b32 v36, 3, v1
    v_lshl_add_u32 v35, v36, 4, v35
    s_lshl_b32 s37, s20, 17
    s_lshl_b32 s38, s24, 6
    s_add_u32 s37, s37, s38
    s_add_u32 s38, s37, s33
    s_lshl_b32 s42, s3, 11
    s_add_u32 s42, s42, {XR}
    v_lshlrev_b32 v37, 8, v32
    v_lshl_add_u32 v37, v33, 1, v37
    v_add_u32 v37, s42, v37
    v_add_u32 v38, s42, v3
    """)
    vm = []

    def ldv(i):
        ld(i)
        vm.extend([("L", i)] * 4)

    def ep_loads():
        for q in range(4):
            a(f"buffer_load_dwordx2 v[{8+2*q}:{9+2*q}], v34, s[28:31], s35 offen offset:{16*q}")
        a(f"""
        s_mov_b32 m0, s42
        s_add_u32 s39, s38, 65536
        buffer_load_dwordx4 v35, s[8:11], s38 offen lds
        s_add_u32 m0, s42, 1024
        s_nop 0
        buffer_load_dwordx4 v35, s[8:11], s39 offen lds
        """)
        vm.extend([("E",)] * 6)

    for i in range(DEPTH):
        ldv(i)
    ACC = 64
    mk()
    for i in range(28):
        last = max(k for k, t in enumerate(vm) if t == ("L", i))
        a(f"s_waitcnt vmcnt({len(vm) - 1 - last})")
        if i % 4 == 0 or i == 27:
            mk()
        slot = (i % DEPTH) * 16
        order = [(0, 0), (0, 1), (1, 0), (1, 1)] if i < 27 else [(0, 1), (1, 0), (1, 1), (0, 0)]
        for aa, bb in order:
            q = 2 * aa + bb
            srcc = "0" if i == 0 else f"v[{ACC+16*q}:{ACC+16*q+15}]"
            a(f"v_mfma_f32_32x32x16_bf16 v[{ACC+16*q}:{ACC+16*q+15}], a[{slot+4*aa}:{slot+4*aa+3}], a[{slot+8+4*bb}:{slot+8+4*bb+3}], {srcc}")
        if i + DEPTH < 28:
            ldv(i + DEPTH)
        if i == 10:
            ep_loads()
        if i == 24:
            for k in range(16):
                chl = 8 * (k >> 2) + (k & 3)
                a(f"ds_read_u16_d16_hi v{16+k}, v37 offset:{chl*64}")
        if i == 25:
            for q in range(4):
                for h in range(2):
                    a(f"""
                    v_lshlrev_b32 v{40+4*q+2*h}, 16, v{8+2*q+h}
                    v_and_b32 v{41+4*q+2*h}, 0xffff0000, v{8+2*q+h}
                    """)
        if i == 26:
            for q in range(1, 4):
                a(f"""
                s_xor_b32 s39, s3, {q}
                s_mul_i32 s39, s39, 12288
                s_add_u32 s39, s39, {(q-1)*4096}
                v_add_u32 v{8+q}, s39, v3
                """)
            a(f"""
            s_mul_i32 s39, s3, 12288
            v_add_u32 v8, s39, v3
            s_waitcnt lgkmcnt(0)
            """)
            for k in range(16):
                a(f"v_and_b32 v{16+k}, 0xffff0000, v{16+k}")
    a("s_nop 8")
    for q in range(1, 4):
        for r in range(4):
            a(f"ds_write_b128 v{8+q}, v[{ACC+16*q+4*r}:{ACC+16*q+4*r+3}] offset:{1024*r}")
    a("""
    s_waitcnt lgkmcnt(0)
    s_barrier
    """)
    mk()
    for r in range(4):
        for q in range(1, 4):
            a(f"ds_read_b128 v[{ACC+16*q+4*r}:{ACC+16*q+4*r+3}], v8 offset:{(q-1)*4096+1024*r}")
    for r in range(4):
        a(f"s_waitcnt lgkmcnt({9-3*r})")
        pr = [4 * r, 4 * r + 2]
        for i in pr:
            a(f"""
            v_pk_add_f32 v[{ACC+i}:{ACC+i+1}], v[{ACC+i}:{ACC+i+1}], v[{ACC+16+i}:{ACC+16+i+1}]
            v_pk_add_f32 v[{ACC+32+i}:{ACC+32+i+1}], v[{ACC+32+i}:{ACC+32+i+1}], v[{ACC+48+i}:{ACC+48+i+1}]
            """)
        for i in pr:
            a(f"v_pk_add_f32 v[{ACC+i}:{ACC+i+1}], v[{ACC+i}:{ACC+i+1}], v[{ACC+32+i}:{ACC+32+i+1}]")
        for n, i in enumerate(pr):
            a(f"v_cvt_pk_bf16_f32 v{12+n}, v{ACC+i}, v{ACC+i+1}")
        for n, i in enumerate(pr):
            a(f"""
            v_lshlrev_b32 v{ACC+i}, 16, v{12+n}
            v_and_b32 v{ACC+i+1}, 0xffff0000, v{12+n}
            """)
        for i in pr:
            a(f"v_pk_add_f32 v[{ACC+i}:{ACC+i+1}], v[{ACC+i}:{ACC+i+1}], v[{40+i}:{41+i}]")
        for n, i in enumerate(pr):
            a(f"v_cvt_pk_bf16_f32 v{12+n}, v{ACC+i}, v{ACC+i+1}")
        for n, i in enumerate(pr):
            a(f"""
            v_lshlrev_b32 v{ACC+i}, 16, v{12+n}
            v_and_b32 v{ACC+i+1}, 0xffff0000, v{12+n}
            """)
        for i in pr:
            a(f"v_pk_add_f32 v[{ACC+i}:{ACC+i+1}], v[{ACC+i}:{ACC+i+1}], v[{16+i}:{17+i}]")
        for i in pr:
            a(f"v_cvt_pk_bf16_f32 v{56+i//2}, v{ACC+i}, v{ACC+i+1}")
    mk()
    a("""
    s_cmp_eq_u32 s36, 0
    s_cbranch_scc0 Lg2_final
    """)
    for k in range(16):
        chl = 8 * (k >> 2) + (k & 3)
        op = "ds_write_b16" if k % 2 == 0 else "ds_write_b16_d16_hi"
        a(f"{op} v37, v{56+k//2} offset:{chl*64}")
    a("""
    v_mov_b32 v12, 0
    v_mov_b32 v13, 0
    v_mov_b32 v14, 0x3f803f80
    """)
    for p in range(8):
        a(f"""
        v_dot2_f32_bf16 v12, v{56+p}, v14, v12
        v_dot2_f32_bf16 v13, v{56+p}, v{56+p}, v13
        """)
    a(f"""
    s_waitcnt lgkmcnt(0)
    ds_read_b128 v[64:67], v38
    ds_read_b128 v[68:71], v38 offset:1024
    v_lshlrev_b32 v36, 3, v33
    v_lshl_add_u32 v36, v32, 2, v36
    s_lshl_b32 s39, s24, 8
    s_add_u32 s39, s39, {STATS2}
    v_permlane32_swap_b32 v12, v13
    s_add_u32 s38, s37, {X2T}
    s_add_u32 s43, s38, 65536
    v_add_f32 v12, v12, v13
    buffer_atomic_add_f32 v12, v36, s[8:11], s39 offen
    s_waitcnt lgkmcnt(1)
    buffer_store_dwordx4 v[64:67], v35, s[8:11], s38 offen sc1
    s_waitcnt lgkmcnt(0)
    buffer_store_dwordx4 v[68:71], v35, s[8:11], s43 offen sc1
    s_branch Lg2_fin
    Lg2_final:
    v_lshlrev_b32 v36, 10, v33
    v_lshl_add_u32 v36, v32, 4, v36
    s_lshl_b32 s39, s24, 15
    s_add_u32 s39, s39, s35
    v_permlane32_swap_b32 v56, v58
    v_permlane32_swap_b32 v57, v59
    v_permlane32_swap_b32 v60, v62
    v_permlane32_swap_b32 v61, v63
    buffer_store_dwordx4 v[56:59], v36, s[44:47], s39 offen
    buffer_store_dwordx4 v[60:63], v36, s[44:47], s39 offen offset:32
    """)
    a("Lg2_fin:")
    mk()
    if stamps:
        a("v_mov_b32 v5, v2")
        mk.dump(8, None, 5)
        a("v_mov_b32 v2, v5")
        a(f"""
        s_waitcnt vmcnt(0) lgkmcnt(0)
        s_memrealtime s[92:93]
        s_waitcnt lgkmcnt(0)
        v_lshlrev_b32 v2, 4, v2
        v_mov_b32 v3, v1
        v_mov_b32 v0, s90
        v_mov_b32 v1, s92
        s_lshl_b32 s94, s2, 6
        s_add_u32 s94, s94, s87
        v_cmp_eq_u32 vcc, 0, v3
        s_and_saveexec_b64 s[88:89], vcc
        buffer_store_dwordx2 v[0:1], v2, s[8:11], s94 offen
        """)
    a("""
    Lg2_end:
    s_endpgm
    """)
    return kd("gemm2a_kernel", 128 + DEPTH * 16, accum=128) + kd("gemm2b_kernel", 128 + DEPTH * 16, accum=128)
```

```python
import math
from common import *

N_KGEN = 512
WG_XT = 512
WG_ST = 576
WG_W1 = 640
WG_W2 = 696
WG_Z = 752
WG_PF = 753
N_PREP = 761
PREP_LDS = 32768

LOG2E = 1.4426950408889634
INV2PI = 1.0 / (2.0 * math.pi)
INV2PI_HI = struct.unpack("<f", struct.pack("<I", 0x3e22f983))[0]
INV2PI_LO = INV2PI - INV2PI_HI


def bf16_round_int(l):
    if l < 256:
        return l
    sh = l.bit_length() - 8
    q, r = l >> sh, l & ((1 << sh) - 1)
    half = 1 << (sh - 1)
    if r > half or (r == half and (q & 1)):
        q += 1
    return q << sh


def qidx(p):
    if p < 256: return p
    if p < 512: return 256 + (p - 256) // 2
    if p < 1024: return 384 + (p - 512) // 4
    return 512 + (p - 1024) // 8


def emit_tables(a, TB):
    a.lines.append(".p2align 8")
    a.lines.append(".type Lkg_tab,@object")
    a.lines.append("Lkg_tab:")
    for l in range(64):
        i, kk = l & 15, l >> 4
        pV = 8 * i
        pA0 = 128 * (i >> 3) + (i & 7)
        pA1 = 256 + 128 * (i >> 2) + 2 * (i & 3) if i < 8 else 512 + 128 * ((i - 8) >> 1) + 4 * ((i - 8) & 1)
        pA2 = 1024 + 128 * i if i < 8 else 2048
        b = i
        q0 = 128 * (kk >> 1) + 4 * (kk & 1) + 8 * b
        qA = 256 + 64 * kk + (4 * b if kk < 2 else 2 * b)
        qB = qA + (2 if kk < 2 else 32)
        q2 = 512 + 64 * kk + b
        w = [f32bits(float(x)) for x in (pV, pA0, pA1, pA2)] + [TB + 4 * q for q in (q0, qA, qB, q2)]
        a.lines.append("    .long " + ", ".join("0x%08x" % x for x in w))
    offs = []
    for m in range(2048 + 128):
        l = 2096 - m
        offs.append(2 * qidx(bf16_round_int(l)) if 0 <= l < 2048 else 2 * 768)
    for m in range(0, len(offs), 16):
        a.lines.append("    .long " + ", ".join("0x%08x" % (offs[m + 2 * j] | (offs[m + 2 * j + 1] << 16)) for j in range(8)))
    a.lines.append(f".size Lkg_tab, {64*32 + len(offs)*2}")


def gen_prep(a, stamps=False, idx=0):
    a.head("prep_kernel")
    if stamps:
        stamp_start(a)
        a(f"s_mov_b32 s87, {STAMPS + idx * 0x10000:#x}")
    mk = Marks(a, stamps)
    a(f"""
    s_cmp_ge_u32 s2, {N_PREP}
    s_cbranch_scc1 Lprep_end
    s_load_dwordx2 s[4:5], s[0:1], {KA_WS}
    v_mov_b32 v127, v0
    v_and_b32 v1, 63, v0            ; lane
    v_lshrrev_b32 v2, 6, v0         ; wave
    s_nop 0
    v_readfirstlane_b32 s3, v2
    s_cmp_lt_u32 s2, {WG_XT}
    s_cbranch_scc1 Lprep_kgen
    s_cmp_lt_u32 s2, {WG_ST}
    s_cbranch_scc1 Lprep_xt
    s_cmp_lt_u32 s2, {WG_W1}
    s_cbranch_scc1 Lprep_st
    s_cmp_lt_u32 s2, {WG_W2}
    s_cbranch_scc1 Lprep_w1
    s_cmp_lt_u32 s2, {WG_Z}
    s_cbranch_scc1 Lprep_w2
    s_waitcnt lgkmcnt(0)
    s_cmp_lt_u32 s2, {WG_PF}
    s_cbranch_scc1 Lprep_z
    s_branch Lprep_pf
    Lprep_kgen:
    """)
    PB, TB, TBH = 0, 4096, 16384
    a(f"""
    s_load_dwordx8 s[12:19], s[0:1], {KA_LOGA}
    s_load_dwordx2 s[20:21], s[0:1], {KA_LOGDT}
    s_getpc_b64 s[30:31]
    Lkg_pc:
    s_add_u32 s30, s30, Lkg_tab-Lkg_pc
    s_addc_u32 s31, s31, 0
    v_lshlrev_b32 v40, 5, v1
    v_lshlrev_b32 v41, 4, v0        ; tid*16
    global_load_dwordx4 v[32:35], v40, s[30:31]
    global_load_dwordx4 v[44:47], v40, s[30:31] offset:16
    global_load_dwordx4 v[52:55], v41, s[30:31] offset:2048
    v_and_b32 v3, 31, v0            ; n_local
    v_lshl_add_u32 v4, v2, 5, v3    ; n
    s_lshl_b32 s22, s2, 8
    v_lshl_add_u32 v4, v4, 1, s22
    s_lshl_b32 s23, s2, 1
    v_mov_b32 v9, s23
    v_and_b32 v42, 0xff, v41
    v_add_u32 v42, 4096+2048, v42
    global_load_dwordx4 v[60:63], v42, s[30:31]
    s_waitcnt lgkmcnt(0)
    global_load_ushort v5, v4, s[12:13]
    global_load_ushort v6, v4, s[14:15]
    global_load_ushort v7, v4, s[16:17]
    global_load_ushort v8, v4, s[18:19]
    global_load_ushort v9, v9, s[20:21]
    """)
    mk()
    a.srd(8, 4, WS_BYTES)
    a(f"""
    v_lshlrev_b32 v36, 10, v2
    v_lshrrev_b32 v31, 4, v1
    v_lshl_add_u32 v37, v31, 6, v36
    v_lshl_add_u32 v36, v3, 5, v36
    s_mul_i32 s24, s3, 3072
    s_mov_b32 s25, {fhex(INV2PI_HI)}
    s_mov_b32 s34, {fhex(14.0)}
    s_mov_b32 s35, 0
    """)
    mk()
    a("s_waitcnt vmcnt(0)")
    mk()
    a(f"""
    v_lshlrev_b32 v5, 16, v5
    v_lshlrev_b32 v9, 16, v9
    v_mul_f32 v9, {fhex(LOG2E)}, v9
    v_mul_f32 v5, {fhex(LOG2E)}, v5
    v_exp_f32 v9, v9
    v_exp_f32 v5, v5
    v_lshlrev_b32 v6, 16, v6
    v_lshlrev_b32 v7, 16, v7
    v_lshlrev_b32 v8, 16, v8
    v_cvt_pk_bf16_f32 v9, v9, v5
    v_and_b32 v5, 0xffff0000, v9
    v_lshlrev_b32 v9, 16, v9
    v_mul_f32 v20, v7, v9
    v_mul_f32 v21, v8, v9
    v_max_f32 v12, abs(v20), abs(v21)
    v_mul_f32 v5, v5, v9
    v_mul_f32 v6, v6, v9
    v_max_f32_dpp v12, v12, v12 row_shr:1 row_mask:0xf bank_mask:0xf
    v_mul_f32 v16, {fhex(-LOG2E)}, v5     ; a2
    v_mul_f32 v11, s25, v6           ; hi
    v_max_f32_dpp v12, v12, v12 row_shr:2 row_mask:0xf bank_mask:0xf
    v_fma_f32 v18, v6, s25, -v11     ; err
    v_and_b32 v17, 0xffffff00, v11   ; b2h
    v_max_f32_dpp v12, v12, v12 row_shr:4 row_mask:0xf bank_mask:0xf
    v_fmac_f32 v18, {fhex(INV2PI_LO)}, v6
    v_sub_f32 v14, v11, v17
    v_max_f32_dpp v12, v12, v12 row_shr:8 row_mask:0xf bank_mask:0xf
    v_add_f32 v18, v18, v14          ; b2l
    v_add_u32 v44, s24, v44
    v_readlane_b32 s26, v12, 15
    v_readlane_b32 s27, v12, 31
    v_add_u32 v45, s24, v45
    v_add_u32 v46, s24, v46
    v_add_u32 v47, s24, v47
    s_max_u32 s26, s26, s27
    s_lshr_b32 s26, s26, 23
    s_sub_u32 s26, 267, s26
    s_min_u32 s26, s26, 239
    s_sub_u32 s27, 241, s26
    s_lshl_b32 s26, s26, 23
    s_lshl_b32 s28, s27, 23
    s_mov_b32 s29, s28
    v_mul_f32 v20, s26, v20
    v_mul_f32 v21, s26, v21
    ds_write_b128 v36, v[16:19]
    ds_write_b64 v36, v[20:21] offset:16
    s_waitcnt lgkmcnt(0)
    """)
    ACC = 100
    PR = 64
    FA = 112
    FV = 24

    def read_params(P0):
        for k in range(2):
            a(f"""
            ds_read_b128 v[{P0+6*k}:{P0+6*k+3}], v37 offset:{k*32}
            ds_read_b64 v[{P0+6*k+4}:{P0+6*k+5}], v37 offset:{k*32 + 16}
            """)

    def ev4(k):
        P = PR + 6 * k
        t = [88, 90, 92, 94]
        cs = [4, 6, 8, 10]
        for m in range(4):
            pp = 32 + (m & 2)
            sel = m & 1
            add = "s[34:35]" if m > 0 else "0"
            a(f"v_pk_fma_f32 v[{t[m]}:{t[m]+1}], v[{P}:{P+1}], v[{pp}:{pp+1}], {add} op_sel:[0,{sel},0] op_sel_hi:[1,{sel},{1 if m > 0 else 0}]")
        for m in range(4):
            a(f"v_fract_f32 v{t[m]+1}, v{t[m]+1}")
        for m in range(4):
            a(f"v_exp_f32 v{t[m]}, v{t[m]}")
        for m in range(4):
            a(f"v_fmac_f32 v{t[m]+1}, v{P+2}, v{32+m}")
        for m in range(4):
            a(f"v_cos_f32 v{cs[m]}, v{t[m]+1}")
            a(f"v_sin_f32 v{cs[m]+1}, v{t[m]+1}")
        for m in range(4):
            a(f"v_pk_mul_f32 v[{cs[m]}:{cs[m]+1}], v[{cs[m]}:{cs[m]+1}], v[{t[m]}:{t[m]+1}] op_sel_hi:[1,0]")
        a(f"""
        v_pk_mul_f32 v[{t[0]}:{t[0]+1}], v[{cs[0]}:{cs[0]+1}], v[{P+4}:{P+5}] op_sel_hi:[1,0] neg_hi:[1,0]
        v_cvt_pk_f16_f32 v{FA+k}, v{cs[1]}, v{cs[1]+1}
        v_pk_fma_f32 v[{t[0]}:{t[0]+1}], v[{cs[0]}:{cs[0]+1}], v[{P+4}:{P+5}], v[{t[0]}:{t[0]+1}] op_sel:[1,1,0] op_sel_hi:[0,1,1] neg_lo:[1,0,0] neg_hi:[1,0,0]
        v_cvt_pk_f16_f32 v{FA+2+k}, v{cs[2]}, v{cs[2]+1}
        v_cvt_pk_f16_f32 v{FA+4+k}, v{cs[3]}, v{cs[3]+1}
        v_cvt_pk_f16_f32 v{FV+k}, v{t[0]}, v{t[0]+1}
        """)

    mk()
    for r in range(0, 12, 2):
        a(f"v_pk_mul_f32 v[{ACC+r}:{ACC+r+1}], v[32:33], 0 op_sel_hi:[1,0]")
    a("s_mov_b32 s36, 0")
    a("Lkg_loop:")
    read_params(PR)
    a("v_add_u32 v37, 256, v37")
    for k in range(2):
        a(f"s_waitcnt lgkmcnt({2-2*k})")
        ev4(k)
    a("s_add_u32 s36, s36, 1")
    a("s_cmp_lt_u32 s36, 4")
    for m in range(3):
        a(f"v_mfma_f32_16x16x16_f16 v[{ACC+4*m}:{ACC+4*m+3}], v[{FA+2*m}:{FA+2*m+1}], v[{FV}:{FV+1}], v[{ACC+4*m}:{ACC+4*m+3}]")
    a("s_cbranch_scc1 Lkg_loop")
    for e in range(4):
        a(f"""
        v_lshrrev_b32 v{65+2*e}, 16, v{52+e}
        v_and_b32 v{64+2*e}, 0xffff, v{52+e}
        v_lshrrev_b32 v{73+2*e}, 16, v{60+e}
        v_and_b32 v{72+2*e}, 0xffff, v{60+e}
        """)
    mk()
    for r in range(0, 12, 2):
        a(f"v_pk_mul_f32 v[{ACC+r}:{ACC+r+1}], v[{ACC+r}:{ACC+r+1}], s[28:29]")
    a(f"""
    v_lshlrev_b32 v40, 2, v0
    v_lshlrev_b32 v42, 1, v0
    v_mov_b32 v43, 0
    ds_write_b128 v44, v[{ACC}:{ACC+3}]
    ds_write_b64 v45, v[{ACC+4}:{ACC+5}]
    ds_write_b64 v46, v[{ACC+6}:{ACC+7}]
    ds_write_b32 v47, v{ACC+8}
    ds_write_b32 v47, v{ACC+9} offset:64
    ds_write_b32 v47, v{ACC+10} offset:128
    ds_write_b32 v47, v{ACC+11} offset:192
    ds_write_b16 v43, v43 offset:{TBH + 2*768}
    s_waitcnt lgkmcnt(0)
    s_barrier
    """)
    mk()
    for j in range(3):
        for w in range(4):
            a(f"ds_read_b32 v{80+4*j+w}, v40 offset:{TB + w*3072 + j*1024}")
    for j in range(3):
        b = 80 + 4 * j
        a(f"""
        s_waitcnt lgkmcnt({8-4*j+j})
        v_pk_add_f32 v[{b}:{b+1}], v[{b}:{b+1}], v[{b+2}:{b+3}]
        v_add_f32 v{b}, v{b}, v{b+1}
        v_cvt_pk_bf16_f32 v{b}, v{b}, v{b}
        ds_write_b16 v42, v{b} offset:{TBH + j*512}
        """)
    a("""
    s_waitcnt lgkmcnt(0)
    s_barrier
    """)
    mk()
    for e in range(8):
        a(f"ds_read_u16 v{80+e}, v{64+e} offset:{TBH}")
    a(f"""
    s_mul_i32 s27, s2, {KSTRIDE}
    s_add_u32 s27, s27, {KBUF + 16}
    s_waitcnt lgkmcnt(0)
    """)
    for e in range(4):
        a(f"v_lshl_or_b32 v{88+e}, v{81+2*e}, 16, v{80+2*e}")
    a("buffer_store_dwordx4 v[88:91], v41, s[8:11], s27 offen sc1")
    mk()
    if stamps:
        a("v_mov_b32 v126, v0")
        a("v_lshrrev_b32 v125, 6, v127")
        mk.dump(8, None, 125)
        a("v_mov_b32 v0, v126")
    a(f"""
    s_cmp_lg_u32 s3, 0
    s_cbranch_scc1 Lprep_fin
    """)
    for e in range(8):
        a(f"ds_read_u16 v{80+e}, v{72+e} offset:{TBH}")
    a(f"""
    s_add_u32 s27, s27, 4096
    v_cmp_gt_u32 vcc, 10, v0
    s_waitcnt lgkmcnt(0)
    """)
    for e in range(4):
        a(f"v_lshl_or_b32 v{92+e}, v{81+2*e}, 16, v{80+2*e}")
    a(f"""
    s_and_saveexec_b64 s[28:29], vcc
    buffer_store_dwordx4 v[92:95], v41, s[8:11], s27 offen sc1
    s_branch Lprep_fin
    """)

    a(f"""
    Lprep_xt:
    """)
    a(f"""
    s_load_dwordx2 s[6:7], s[0:1], {KA_U}
    s_sub_u32 s20, s2, {WG_XT}
    s_lshl_b32 s20, s20, 2
    s_add_u32 s20, s20, s3
    s_and_b32 s21, s20, 7           ; cb
    s_lshr_b32 s22, s20, 3          ; tb
    v_lshrrev_b32 v4, 3, v1         ; row
    v_and_b32 v5, 7, v1
    v_bfe_u32 v6, v1, 4, 1
    v_lshlrev_b32 v7, 2, v6
    v_xor_b32 v5, v5, v7            ; c16
    v_lshlrev_b32 v4, 10, v4
    v_lshl_add_u32 v4, v5, 4, v4
    s_lshl_b32 s23, s22, 16
    s_lshl_b32 s24, s21, 7
    s_add_u32 s23, s23, s24
    s_lshl_b32 s26, s3, 13
    v_lshrrev_b32 v8, 4, v1         ; G
    v_bfe_u32 v9, v1, 2, 2          ; r
    v_and_b32 v10, 3, v1            ; c
    v_lshlrev_b32 v11, 10, v8       ; G*1024
    v_lshl_add_u32 v11, v9, 7, v11  ; + r*128
    v_lshl_add_u32 v11, v10, 3, v11 ; + 8c
    v_add_u32 v11, s26, v11
    v_lshrrev_b32 v9, 1, v9
    v_lshl_add_u32 v12, v9, 6, v11
    v_xor_b32 v9, 1, v9
    v_lshl_add_u32 v13, v9, 6, v11
    v_and_b32 v14, 15, v1
    v_lshlrev_b32 v14, 12, v14
    v_lshl_add_u32 v14, v8, 4, v14
    s_lshl_b32 s25, s21, 18
    s_lshl_b32 s27, s22, 7
    s_add_u32 s25, s25, s27
    s_add_u32 s25, s25, {X0T}
    s_waitcnt lgkmcnt(0)
    """)
    a.srd(8, 4, WS_BYTES)
    a.srd(12, 6, 0x200000)
    for i in range(8):
        a(f"""
        s_add_u32 m0, s26, {i*1024}
        s_add_u32 s28, s23, {i*8192}
        buffer_load_dwordx4 v4, s[12:15], s28 offen lds
        """)
    for q in range(2):
        a(f"s_waitcnt vmcnt({4 if q == 0 else 4})")
        for cg in range(4):
            b = 16 + 16 * q + 4 * cg
            base = 12 if cg < 2 else 13
            a(f"""
            ds_read_b64_tr_b16 v[{b}:{b+1}], v{base} offset:{q*4096 + (cg&1)*32}
            ds_read_b64_tr_b16 v[{b+2}:{b+3}], v{base} offset:{q*4096 + (cg&1)*32 + 512}
            """)
        for cg in range(4):
            b = 16 + 16 * q + 4 * cg
            a(f"""
            s_waitcnt lgkmcnt({6-2*cg})
            s_add_u32 s28, s25, {cg*65536}
            buffer_store_dwordx4 v[{b}:{b+3}], v14, s[8:11], s28 offen offset:{64*q} sc1
            """)
    a("s_branch Lprep_fin")

    a(f"""
    Lprep_st:
    s_load_dwordx2 s[6:7], s[0:1], {KA_U}
    s_sub_u32 s20, s2, {WG_ST}
    s_lshl_b32 s20, s20, 2
    s_add_u32 s20, s20, s3          ; wt
    s_lshl_b32 s20, s20, 3
    v_lshrrev_b32 v3, 3, v1
    v_add_u32 v3, s20, v3           ; row
    v_and_b32 v4, 7, v1             ; part
    v_lshlrev_b32 v5, 10, v3
    v_lshl_add_u32 v5, v4, 4, v5
    v_mov_b32 v6, 0x3f803f80
    v_mov_b32 v8, 0
    v_mov_b32 v9, 0
    s_waitcnt lgkmcnt(0)
    """)
    a.srd(8, 4, WS_BYTES)
    a.srd(12, 6, 0x200000)
    for j in range(8):
        a(f"buffer_load_dwordx4 v[{16+4*j}:{19+4*j}], v5, s[12:15], 0 offen offset:{128*j}")
    for j in range(8):
        a(f"s_waitcnt vmcnt({7-j})")
        for r in range(4):
            a(f"""
            v_dot2_f32_bf16 v8, v{16+4*j+r}, v6, v8
            v_dot2_f32_bf16 v9, v{16+4*j+r}, v{16+4*j+r}, v9
            """)
    a(f"""
    s_nop 3
    v_add_f32_dpp v8, v8, v8 quad_perm:[1,0,3,2] row_mask:0xf bank_mask:0xf
    v_add_f32_dpp v9, v9, v9 quad_perm:[1,0,3,2] row_mask:0xf bank_mask:0xf
    s_nop 1
    v_add_f32_dpp v8, v8, v8 quad_perm:[2,3,0,1] row_mask:0xf bank_mask:0xf
    v_add_f32_dpp v9, v9, v9 quad_perm:[2,3,0,1] row_mask:0xf bank_mask:0xf
    s_nop 1
    v_add_f32_dpp v8, v8, v8 row_half_mirror row_mask:0xf bank_mask:0xf
    v_add_f32_dpp v9, v9, v9 row_half_mirror row_mask:0xf bank_mask:0xf
    v_lshlrev_b32 v10, 3, v3
    s_mov_b32 s21, {STATS0}
    v_cmp_eq_u32 vcc, 0, v4
    s_and_saveexec_b64 s[28:29], vcc
    buffer_store_dwordx2 v[8:9], v10, s[8:11], s21 offen
    s_branch Lprep_fin
    """)

    def tr_setup():
        a(f"""
        s_lshl_b32 s26, s3, 13
        v_lshrrev_b32 v4, 2, v1
        v_and_b32 v5, 3, v1             ; 16B chunk
        v_bfe_u32 v8, v1, 4, 1          ; th
        v_lshrrev_b32 v9, 5, v1         ; g
        v_bfe_u32 v10, v1, 2, 2         ; r
        v_lshlrev_b32 v6, 4, v1         ; lane*16
        v_lshlrev_b32 v11, 6, v10       ; r*64
        v_lshl_add_u32 v11, v8, 5, v11  ; + 32 th
        v_lshl_add_u32 v11, v5, 3, v11  ; + 8c
        v_add_u32 v11, s26, v11
        """)

    a(f"""
    Lprep_w1:
    s_load_dwordx2 s[6:7], s[0:1], {KA_W1}
    s_sub_u32 s20, s2, {WG_W1}      ; ft
    """)
    tr_setup()
    a(f"""
    v_lshl_add_u32 v11, v9, 9, v11  ; + g*8 rows*64
    v_mul_u32_u24 v4, 3584, v4
    v_lshl_add_u32 v4, v5, 4, v4
    s_lshl_b32 s21, s20, 6
    s_mul_i32 s22, s3, {8*16*3584}
    s_add_u32 s21, s21, s22
    s_lshl_b32 s23, s20, 15
    s_add_u32 s23, s23, {W1F}
    s_lshl_b32 s24, s3, 13
    s_add_u32 s24, s24, s23
    v_mov_b32 v7, 0x3f803f80
    v_mov_b32 v3, 0
    s_waitcnt lgkmcnt(0)
    """)
    a.srd(8, 4, WS_BYTES)
    a.srd(12, 6, 512 * 1792 * 2)

    def tr_body(src_step, off2, colsum):
        for i in range(8):
            a(f"""
            s_add_u32 m0, s26, {i*1024}
            s_add_u32 s28, s21, {i*src_step}
            buffer_load_dwordx4 v4, s[12:15], s28 offen lds
            """)
        for q in range(2):
            a("s_waitcnt vmcnt(4)")
            for i in range(4 * q, 4 * q + 4):
                b = 16 + 4 * i
                a(f"""
                ds_read_b64_tr_b16 v[{b}:{b+1}], v11 offset:{i*1024}
                ds_read_b64_tr_b16 v[{b+2}:{b+3}], v11 offset:{i*1024 + off2}
                """)
            a(f"s_add_u32 s25, s24, {q*4096}")
            for i in range(4 * q, 4 * q + 4):
                b = 16 + 4 * i
                a(f"""
                s_waitcnt lgkmcnt({6-2*(i%4)})
                buffer_store_dwordx4 v[{b}:{b+3}], v6, s[8:11], s25 offen offset:{(i%4)*1024} sc1
                """)
                if colsum:
                    for j in range(4):
                        a(f"v_dot2_f32_bf16 v3, v{b+j}, v7, v3")
    tr_body(16 * 3584, 256, True)
    a(f"""
    s_nop 3
    v_lshlrev_b32 v9, 2, v0
    s_barrier
    ds_write_b32 v9, v3
    s_waitcnt lgkmcnt(0)
    s_barrier
    s_cmp_lg_u32 s3, 0
    s_cbranch_scc1 Lprep_fin
    v_and_b32 v9, 31, v1
    v_lshlrev_b32 v9, 2, v9
    """)
    for j in range(8):
        a(f"ds_read_b32 v{16+j}, v9 offset:{128*j}")
    a(f"""
    s_waitcnt lgkmcnt(0)
    v_add_f32 v16, v16, v17
    v_add_f32 v18, v18, v19
    v_add_f32 v20, v20, v21
    v_add_f32 v22, v22, v23
    v_add_f32 v16, v16, v18
    v_add_f32 v20, v20, v22
    v_add_f32 v16, v16, v20          ; colsum
    s_lshl_b32 s25, s20, 7
    s_add_u32 s25, s25, {CSUM}
    v_cmp_gt_u32 vcc, 32, v1
    s_and_saveexec_b64 s[28:29], vcc
    buffer_store_dword v16, v9, s[8:11], s25 offen
    s_branch Lprep_fin
    """)

    a(f"""
    Lprep_w2:
    s_load_dwordx2 s[6:7], s[0:1], {KA_W2}
    s_sub_u32 s20, s2, {WG_W2}
    s_lshl_b32 s20, s20, 2
    s_add_u32 s20, s20, s3          ; wt 0..223
    s_mul_i32 s22, s20, 4682
    s_lshr_b32 s22, s22, 16
    s_mul_i32 s23, s22, 14
    s_sub_u32 s23, s20, s23         ; wt%14
    """)
    tr_setup()
    a(f"""
    v_lshl_add_u32 v11, v9, 8, v11  ; + g*4 rows*64
    v_lshlrev_b32 v4, 10, v4
    v_lshl_add_u32 v4, v5, 4, v4
    s_lshl_b32 s21, s22, 6
    s_lshl_b32 s24, s23, 17         ; ks0*16384
    s_add_u32 s21, s21, s24
    s_lshl_b32 s24, s20, 13
    s_add_u32 s24, s24, {W2F}
    s_waitcnt lgkmcnt(0)
    """)
    a.srd(8, 4, WS_BYTES)
    a.srd(12, 6, 512 * 1792 * 2)
    tr_body(16384, 512, False)
    a("s_branch Lprep_fin")

    a(f"""
    Lprep_z:
    """)
    a.srd(8, 4, WS_BYTES)
    a(f"""
    v_lshlrev_b32 v3, 4, v0
    v_mov_b32 v4, 0
    v_mov_b32 v5, 0
    v_mov_b32 v6, 0
    v_mov_b32 v7, 0
    """)
    for j in range(4):
        a(f"""
        s_mov_b32 s20, {STATS2 + 4096*j}
        buffer_store_dwordx4 v[4:7], v3, s[8:11], s20 offen
        """)
    a(f"""
    s_branch Lprep_fin
    Lprep_pf:
    """)
    a.srd(8, 4, WS_BYTES)
    a(f"""
    s_getpc_b64 s[20:21]
    Lprep_pc:
    s_add_u32 s20, s20, conv1_kernel-Lprep_pc
    s_addc_u32 s21, s21, 0
    s_mov_b32 s22, Ltext_end-conv1_kernel-16
    v_lshlrev_b32 v3, 4, v0
    Lprep_pf_loop:
    v_cmp_ge_u32 vcc, s22, v3
    s_and_saveexec_b64 s[28:29], vcc
    s_cbranch_execz Lprep_fin
    global_load_dwordx4 v[4:7], v3, s[20:21]
    v_add_u32 v3, 4096, v3
    s_branch Lprep_pf_loop
    """)
    a("Lprep_fin:")
    if stamps:
        stamp_end(a, idx, 8, vtmp=120, tid_saved=127)
    a("""
    Lprep_end:
    s_endpgm
    """)
    emit_tables(a, TB)
    return kd("prep_kernel", 128)
```
